```python
import torch

def _softmax(x, axis=-1):
    return torch.softmax(x, dim=axis)
def _gelu(x):
    return torch.nn.functional.gelu(x, approximate="tanh")
def _silu(x):
    return torch.nn.functional.silu(x)
def _sigmoid(x):
    return torch.sigmoid(x)
def _layernorm(x, axis=-1, eps=1e-5):
    m = x.mean(dim=axis, keepdim=True)
    v = x.var(dim=axis, keepdim=True, unbiased=False)
    return (x - m) / torch.sqrt(v + eps)
def _scatter_add(tgt, idx, src, axis=0):
    return tgt.clone().index_add_(axis, idx, src)
def _segment_sum(src, seg, n):
    out = torch.zeros((n,) + src.shape[1:], dtype=src.dtype)
    return out.index_add_(0, seg, src)
def _pad(x, pw):
    flat = tuple(v for pair in reversed(pw) for v in pair)
    return torch.nn.functional.pad(x, flat)

kernel_name = 'recurrent_scan__sliding_block_cached__glu_gated_glu__decode'

def setup_inputs():

    _w = (lambda a: (lambda t: t.to(torch.bfloat16) if t.is_floating_point() else t)(torch.as_tensor(a)))
    def _A_setup():
        B, Sq, D = 8, 1, 512
        Hq, Hkv, Sk, Dh = 32, 8, 8192, 128
        assert Hq % Hkv == 0, (Hq, Hkv)
        return {
            "x": _w((lambda *s: torch.randn(*s, dtype=torch.bfloat16) * 0.05)(B, Sq, D)),
            "k_cache": _w((lambda *s: torch.randn(*s, dtype=torch.bfloat16) * 1.6)(B, Hkv, Sk, Dh)),
            "v_cache": _w((lambda *s: torch.randn(*s, dtype=torch.bfloat16) * 0.2)(B, Hkv, Sk, Dh)),
            "wq": _w((lambda *s: torch.randn(*s, dtype=torch.bfloat16) * 1.6)(D, Hq * Dh) * (D ** -0.5)),
            "wo": _w((lambda *s: torch.randn(*s, dtype=torch.bfloat16) * 0.2)(Hq * Dh, D) * ((Hq * Dh) ** -0.5)),
        }
    _A_in = _A_setup()

    def _B_setup():
        B, S, D, F = 8, 1, 512, 1792
        return {
            "x": _w((lambda *s: torch.randn(*s, dtype=torch.bfloat16) * 0.05)(B, S, D)),
            "w_gate": _w((lambda *s: torch.randn(*s, dtype=torch.bfloat16) * 0.2)(D, F)),
            "w_up": _w((lambda *s: torch.randn(*s, dtype=torch.bfloat16) * 0.1)(D, F)),
            "w_down": _w((lambda *s: torch.randn(*s, dtype=torch.bfloat16) * 0.1)(F, D)),
        }
    _B_in = _B_setup()

    return {
        "A_x": _A_in["x"],
        "A_k_cache": _A_in["k_cache"],
        "A_v_cache": _A_in["v_cache"],
        "A_wq": _A_in["wq"],
        "A_wo": _A_in["wo"],
        "B_x": _B_in["x"],
        "B_w_gate": _B_in["w_gate"],
        "B_w_up": _B_in["w_up"],
        "B_w_down": _B_in["w_down"],
    }

def reference(A_x, A_k_cache, A_v_cache, A_wq, A_wo, B_x, B_w_gate, B_w_up, B_w_down):
    def _A_ref(x, k_cache, v_cache, wq, wo):
        B, Sq, D = x.shape
        Hq, Dh = 32, 128
        Hkv, Sk = k_cache.shape[1], k_cache.shape[2]
        W = min(4096, max(256, Sk // 4))
        rep = Hq // Hkv
        q = (lambda x, *d: x.permute(*d))((x @ wq).reshape(B, Sq, Hq, Dh), 0, 2, 1, 3)
        k = (lambda x, n, axis: torch.repeat_interleave(x, n, dim=axis))(k_cache[:, :, Sk - W:, :], rep, axis=1)
        v = (lambda x, n, axis: torch.repeat_interleave(x, n, dim=axis))(v_cache[:, :, Sk - W:, :], rep, axis=1)
        scores = torch.einsum("bhqd,bhkd->bhqk", q, k) * (Dh ** -0.5)
        p = _softmax(scores, axis=-1)
        o = torch.einsum("bhqk,bhkd->bhqd", p, v)
        return (lambda x, *d: x.permute(*d))(o, 0, 2, 1, 3).reshape(B, Sq, Hq * Dh) @ wo

    def _B_ref(x, w_gate, w_up, w_down):
        g = torch.einsum("bsd,df->bsf", x, w_gate)
        u = torch.einsum("bsd,df->bsf", x, w_up)
        h = _sigmoid(g) * u
        return torch.einsum("bsf,fd->bsd", h, w_down)

    x = A_x
    xn = _layernorm(x, axis=-1)
    s = _A_ref(xn, A_k_cache, A_v_cache, A_wq, A_wo)
    g = _silu(_B_ref(xn, B_w_gate, B_w_up, B_w_down))
    return x + s * g
```

```python
import re
NAME = "recurrent_scan__sliding_block_cached__glu_gated_glu__decode"
HDR = open("cdna_kernels/%s.s.ref" % NAME).read().split("; Override launch")[0]

def regs_of(op):
    op = op.strip()
    op = op.lstrip("-")
    m = re.fullmatch(r"abs\((.*)\)", op)
    if m: op = m.group(1)
    m = re.fullmatch(r"\|(.*)\|", op)
    if m: op = m.group(1)
    m = re.fullmatch(r"([vsa])\[(\d+):(\d+)\]", op)
    if m:
        return {f"{m.group(1)}{i}" for i in range(int(m.group(2)), int(m.group(3)) + 1)}
    m = re.fullmatch(r"([vsa])(\d+)", op)
    if m:
        return {op}
    if op == "vcc": return {"vcc"}
    if op in ("vcc_lo", "vcc_hi"): return {"vcc"}
    if op == "exec": return {"exec"}
    if op == "m0": return {"m0"}
    return set()

TRANS = ("v_exp_f32", "v_log_f32", "v_rcp_f32", "v_rsq_f32", "v_sqrt_f32", "v_sin_f32", "v_cos_f32")

class Ins:
    def __init__(self, text):
        self.text = text
        t = text.split(";")[0].strip()
        self.label = t.endswith(":")
        self.mn = t.split()[0] if t else ""
        rest = t[len(self.mn):].strip()
        ops = []; cur = ""; d = 0
        for ch in rest:
            if ch == "[": d += 1
            if ch == "]": d -= 1
            if ch == "," and d == 0:
                ops.append(cur.strip()); cur = ""
            else: cur += ch
        if cur.strip(): ops.append(cur.strip())
        self.mods = ""
        if ops:
            parts = ops[-1].split()
            ops[-1] = parts[0]
            self.mods = " ".join(parts[1:])
        self.ops = ops
        mn = self.mn
        self.w = set(); self.r = set()
        self.kind = "other"
        self.dppsrc = set(); self.mfA = set(); self.mfC = set(); self.storedata = set()
        R = [regs_of(o) for o in ops]
        U = lambda L: set().union(*L) if L else set()
        if self.label or not mn:
            self.kind = "label"; return
        if mn.startswith("v_mfma"):
            self.kind = "mfma"; self.w = R[0]; self.mfA = R[1] | R[2]; self.mfC = R[3]; self.r = self.mfA | self.mfC
        elif mn.startswith("v_"):
            self.kind = "valu"
            if mn.startswith("v_cmp"):
                self.w = R[0]; self.r = U(R[1:])
            elif mn.startswith("v_permlane") and "swap" in mn:
                self.w = R[0] | R[1]; self.r = R[0] | R[1]; self.kind = "permlane"
            elif mn.startswith(("v_add_co", "v_sub_co", "v_addc_co", "v_subb_co")):
                self.w = R[0] | R[1]; self.r = U(R[2:])
            else:
                self.w = R[0]; self.r = U(R[1:])
                if mn.startswith(("v_fmac", "v_dot2c")): self.r |= R[0]
            if "_dpp" in mn or "quad_perm" in self.mods or "row_" in self.mods:
                self.dppsrc = R[1] if not mn.startswith("v_cmp") else R[1]
                self.r |= R[0]
        elif mn.startswith("ds_"):
            self.kind = "ds"
            if mn.startswith(("ds_read", "ds_bpermute", "ds_swizzle")) or "_rtn" in mn:
                self.w = R[0]; self.r = U(R[1:])
            else:
                self.r = U(R)
        elif mn.startswith(("buffer_", "global_")):
            self.kind = "vmem"
            if "load" in mn and "lds" not in self.mods.split() and "load_lds" not in mn:
                self.w = R[0]; self.r = U(R[1:])
            else:
                self.r = U(R)
                if "lds" in self.mods.split(): self.r |= {"m0"}; self.ldsdma = True
                if "store" in mn and ("x4" in mn or "x3" in mn):
                    self.storedata = R[0] if mn.startswith("buffer_") else R[1]
        elif mn.startswith("s_"):
            self.kind = "salu"
            if mn.startswith(("s_cmp", "s_cbranch", "s_branch", "s_waitcnt", "s_nop", "s_barrier", "s_sleep", "s_setprio", "s_endpgm", "s_bitcmp")):
                self.r = U(R)
            else:
                self.w = R[0] if R else set(); self.r = U(R[1:])
                if "saveexec" in mn: self.w |= {"exec"}
    def states(self):
        if self.kind == "label": return 0
        if self.mn == "s_nop": return int(self.ops[0], 0) + 1
        return 1

def need(p, c):
    n = 0
    pv = p.kind in ("valu", "permlane")
    cv = c.kind in ("valu", "permlane")
    vg = lambda S: {x for x in S if x[0] in "va" and x != "vcc"}
    sg = lambda S: {x for x in S if x[0] == "s" or x == "vcc"}
    if pv:
        if c.kind == "mfma" and vg(p.w) & c.r: n = max(n, 2)
        if cv and c.dppsrc & vg(p.w): n = max(n, 2)
        if c.kind == "permlane" and vg(p.w) & c.r: n = max(n, 2)
        if cv and c.mn.startswith(("v_readfirstlane", "v_readlane")) and vg(p.w) & c.r: n = max(n, 1)
        if cv and sg(p.w) & c.r: n = max(n, 4 if c.mn.startswith(("v_readlane", "v_writelane")) else 2)
        if c.kind == "vmem" and sg(p.w) & c.r: n = max(n, 5)
        if p.mn.startswith(TRANS) and (cv or c.kind == "mfma") and vg(p.w) & c.r: n = max(n, 1)
        if p.mn.startswith("v_dot2") and (vg(p.w) & (c.r | c.w)) and c.kind != "salu":
            if not (c.mn == p.mn): n = max(n, 3)
            elif c.mn.startswith("v_dot2c"):
                if vg(p.w) & (regs_of(c.ops[1]) | regs_of(c.ops[2])): n = max(n, 3)
            else:
                if vg(p.w) & (regs_of(c.ops[1]) | regs_of(c.ops[2])): n = max(n, 3)
        if ("sdwa" in p.mn or "op_sel" in p.mods) and cv and vg(p.w) & c.r: n = max(n, 1)
    if p.kind == "mfma":
        passes = 4 if "16x16x32" in p.mn or "16x16x16" in p.mn else 8
        big = {4: 8, 8: 12}[passes]
        if c.kind == "mfma":
            if p.w & c.mfA: n = max(n, big)
            if p.w & c.mfC and p.w != c.mfC: n = max(n, big - 2)
            if p.w & c.w and not (p.w == c.mfC): n = max(n, big - 2)
        elif c.kind in ("valu", "permlane", "ds", "vmem"):
            if p.w & (c.r | c.w): n = max(n, big)
            if cv and p.mfC & c.w: n = max(n, {4: 3, 8: 7}[passes])
    if p.kind == "vmem" and p.storedata and (p.storedata & c.w) and c.kind != "salu":
        n = max(n, 2)
    if p.kind == "salu" and "m0" in p.w and c.kind == "vmem" and "m0" in c.r: n = max(n, 1)
    return n

class Asm:
    def __init__(self):
        self.lines = []
        self.n = 0
    def __call__(self, s):
        for l in s.strip("\n").split("\n"):
            l = l.strip()
            if not l: continue
            self.lines.append(l)
    def label(self, p="L"):
        self.n += 1
        return f"{p}_{self.n}"
    def text(self, fix=True):
        out = []
        hist = []
        for l in self.lines:
            if l.startswith(";") or l.startswith("."):
                out.append("    " + l); continue
            ins = Ins(l)
            if fix and ins.kind != "label":
                dist = 0; req = 0
                for p in reversed(hist):
                    k = need(p, ins)
                    if k - dist > req: req = k - dist
                    dist += p.states()
                    if dist > 24: break
                while req > 0:
                    k = min(req, 16)
                    nop = Ins(f"s_nop {k-1}")
                    out.append(f"    s_nop {k-1}"); hist.append(nop); req -= k
            hist.append(ins)
            out.append(l if ins.label else "    " + l)
        return "\n".join(out) + "\n"

def wrap(body, grid, block, lds, vgpr, sgpr=102, accum=None):
    if accum is None:
        accum = (vgpr + 3) // 4 * 4
    return HDR + f"""; @launch grid=({grid},1,1) block=({block},1,1) lds={lds}
.amdgcn_target "amdgcn-amd-amdhsa--gfx950"
.text
.globl {NAME}_kernel
.p2align 8
.type {NAME}_kernel,@function
{NAME}_kernel:
{body}
.section .rodata,"a"
.p2align 6
.amdhsa_kernel {NAME}_kernel
  .amdhsa_next_free_vgpr {vgpr}
  .amdhsa_next_free_sgpr {sgpr}
  .amdhsa_accum_offset {accum}
  .amdhsa_group_segment_fixed_size 0
  .amdhsa_kernarg_size 96
  .amdhsa_user_sgpr_count 2
  .amdhsa_user_sgpr_kernarg_segment_ptr 1
  .amdhsa_system_sgpr_workgroup_id_x 1
.end_amdhsa_kernel
"""
```

```python
import sys
from asmlib import *

WS_P1 = 0x10000
P1_KQ = 8 * 7680 * 4
WS_O  = 0x100000
WS_ML = 0x180000
WS_S  = 0x200000
WS_B  = 0x300000
WS_SIZE = 0x400000
L_S1   = 0
L_WO   = 16384
L_Q    = 32768
L_Z    = L_Q + 1280
L_P    = L_Z + 256
PSTR   = 1056
L_O    = L_P + 4 * PSTR
L_OI   = L_O + 8192
OISTR  = 144
L_H    = L_OI + 8 * OISTR
L_MX   = L_H + 1024
L_LS   = L_MX + 128
L_F1   = L_LS + 128
L_FQ   = L_F1 + 16
L_FP   = L_FQ + 16
L_END  = L_MX + 512
assert L_O % 16 == 0 and L_OI % 16 == 0 and L_H % 16 == 0 and L_MX % 16 == 0

DPP = "row_mask:0xf bank_mask:0xf"
LOG2E = 0x3fb8aa3b
SCALE = 0x3db504f3
sH, sT = "s40", ["s41", "s42", "s43", "s44"]
sE1 = "s45"
WS = "s[48:51]"
vFF = "v3"

def gen(diag=False, opts=None):
    o = dict(spin=400000, poll=40000)
    o.update(opts or {})
    a = Asm()
    nst = [0]
    def stamp(i):
        if diag:
            a(f"s_memrealtime s[{72+2*i}:{73+2*i}]")
    def bf16r(dst, src, tmp=None):
        tmp = tmp or dst
        a(f"v_cvt_pk_bf16_f32 {tmp}, {src}, {src}")
        a(f"v_lshlrev_b32 {dst}, 16, {tmp}")
    def tag(base, dst=None):
        dst = base if dst is None else dst
        for i in range(4):
            a(f"v_bfi_b32 v{dst+i}, {vFF}, {sT[i]}, v{base+i}")
    def chk(base, acc, first):
        for i in range(4):
            a(f"v_msad_u8 {acc}, v{base+i}, {sT[i]}, {'0' if (first and i == 0) else acc}")
    def swap_reduce(op, x, t):
        a(f"v_mov_b32 {t}, {x}")
        a(f"v_permlane16_swap_b32 {x}, {t}")
        a(f"{op} {x}, {x}, {t}")
        a(f"v_mov_b32 {t}, {x}")
        a(f"v_permlane32_swap_b32 {x}, {t}")
        a(f"{op} {x}, {x}, {t}")
    def quad_reduce(op, xs):
        for perm in ("[1,0,3,2]", "[2,3,0,1]"):
            for x in xs:
                a(f"{op}_dpp {x}, {x}, {x} quad_perm:{perm} {DPP}")
    def lds_spin(addr, off, width=1, dst=8):
        L = a.label("spin"); D = a.label("spind")
        a(f"s_mov_b32 s96, {o['spin']}")
        a(f"{L}:")
        if width == 1:
            a(f"ds_read_b32 v{dst}, {addr} offset:{off}")
            f = f"v{dst}"
        else:
            a(f"ds_read_b64 v[{dst}:{dst+1}], {addr} offset:{off}")
            f = f"v{dst+1}"
        a(f"""
        s_waitcnt lgkmcnt(0)
        v_cmp_ne_u32 vcc, 1, {f}
        s_cbranch_vccz {D}
        s_sleep 1
        s_sub_u32 s96, s96, 1
        s_cbranch_scc0 {L}
        {D}:
        """)
    def set_flag(off, vt="v8", va="v9"):
        a(f"""
        v_mov_b32 {vt}, 1
        v_mov_b32 {va}, {off}
        s_mov_b64 exec, 1
        ds_write_b32 {va}, {vt}
        s_mov_b64 exec, -1
        """)
    def tags_setup():
        a(f"""
        s_add_u32 {sE1}, s40, 1
        s_mul_i32 {sH}, {sE1}, 0x9E3779B1
        """)
        for i in range(4):
            a(f"""
            s_bfe_u32 {sT[i]}, {sH}, {(7 << 16) | (7 * i)}
            s_lshl_b32 {sT[i]}, {sT[i]}, 1
            s_or_b32 {sT[i]}, {sT[i]}, 1
            """)
        a(f"""
        s_mov_b32 s48, s38
        s_and_b32 s49, s39, 0xffff
        s_mov_b32 s50, {WS_SIZE}
        s_mov_b32 s51, 0x20000
        """)
    def poll(loads, nreg_bases, acc="v8", pre=None):
        L = a.label("poll"); D = a.label("polld")
        a(f"s_mov_b32 s96, {o['poll']}")
        a(f"{L}:")
        for l in loads: a(l)
        n = len(loads)
        for i, b in enumerate(nreg_bases):
            a(f"s_waitcnt vmcnt({n-1-i})")
            chk(b, acc, i == 0)
        a(f"""
        v_cmp_ne_u32 vcc, 0, {acc}
        s_cbranch_vccz {D}
        s_sub_u32 s96, s96, 1
        s_cbranch_scc0 {L}
        {D}:
        """)

    a(f"""
    s_cmp_ge_u32 s2, 256
    s_cbranch_scc1 L_end
    s_load_dwordx16 s[16:31], s[0:1], 0
    s_load_dwordx8 s[32:39], s[0:1], 64
    v_lshrrev_b32 v4, 6, v0
    v_and_b32 v0, 63, v0
    v_readfirstlane_b32 s3, v4
    v_lshrrev_b32 v1, 4, v0
    v_and_b32 v2, 15, v0
    v_mov_b32 {vFF}, 0xff
    v_mov_b32 v6, 0
    v_mov_b32 v7, 0
    v_lshlrev_b32 v5, 3, v0
    ds_write_b64 v5, v[6:7] offset:{L_MX}
    v_lshlrev_b32 v13, 6, v2
    v_lshl_add_u32 v13, v1, 4, v13
    """)
    stamp(0)
    a(f"""
    s_lshr_b32 s56, s2, 2
    s_lshl_b32 s56, s56, 21
    s_and_b32 s57, s2, 3
    s_lshl_b32 s57, s57, 17
    s_add_u32 s56, s56, s57
    s_add_u32 s56, s56, 0x180000
    s_and_b32 s58, s3, 3
    s_lshl_b32 s57, s58, 15
    s_add_u32 s56, s56, s57
    """)
    for t in range(8):
        a(f"s_mov_b32 s{60+t}, {t*4096}")
    a("""
    s_waitcnt lgkmcnt(0)
    s_barrier
    s_cmp_ge_u32 s3, 4
    s_cbranch_scc1 L_vwave
    """)
    a(f"""
    s_setprio 2
    v_lshlrev_b32 v4, 8, v2
    v_lshl_add_u32 v4, v1, 4, v4
    s_waitcnt lgkmcnt(0)
    s_load_dword s40, s[38:39], 0
    s_add_u32 s4, s18, s56
    s_addc_u32 s5, s19, 0
    s_and_b32 s5, s5, 0xffff
    s_mov_b32 s6, 32768
    s_mov_b32 s7, 0x20000
    """)
    for t in range(8):
        for s in range(4):
            r = 128 + (t * 4 + s) * 4
            a(f"buffer_load_dwordx4 v[{r}:{r+3}], v4, s[4:7], s{60+t} offen offset:{s*64} nt")
    a("s_waitcnt lgkmcnt(0)")
    tags_setup()
    stamp(1)
    a("""
    s_setprio 3
    s_cmp_eq_u32 s3, 0
    s_cbranch_scc1 L_k0
    s_cmp_eq_u32 s3, 1
    s_cbranch_scc1 L_k1
    s_cmp_eq_u32 s3, 2
    s_cbranch_scc1 L_k2
    s_branch L_kwait
    """)
    a(f"""
    L_k0:
    s_lshr_b32 s56, s2, 5
    s_mul_i32 s56, s56, {7680*4}
    s_bfe_u32 s57, s2, {(3 << 16) | 2}
    s_lshl_b32 s57, s57, 11
    s_add_u32 s56, s56, s57
    s_add_u32 s60, s56, {WS_P1}
    s_add_u32 s61, s60, {P1_KQ}
    s_add_u32 s62, s61, {P1_KQ}
    s_add_u32 s63, s62, {P1_KQ}
    v_lshlrev_b32 v5, 4, v0
    v_mov_b32 v8, 0
    v_lshlrev_b32 v9, 2, v0
    ds_write_b32 v9, v8 offset:{L_Z}
    s_waitcnt vmcnt(0)
    """)
    poll([f"buffer_load_dwordx4 v[{24+4*j}:{27+4*j}], v5, {WS}, s{60+(j>>1)} offen offset:{(j&1)*1024} sc1" for j in range(8)],
         [24 + 4 * j for j in range(8)])
    for hf in range(2):
        for i in range(4):
            a(f"v_add_f32 v{24+4*hf+i}, v{24+4*hf+i}, v{32+4*hf+i}")
            a(f"v_add_f32 v{40+4*hf+i}, v{40+4*hf+i}, v{48+4*hf+i}")
        for i in range(4):
            a(f"v_add_f32 v{24+4*hf+i}, v{24+4*hf+i}, v{40+4*hf+i}")
    a(f"""
    v_cvt_pk_bf16_f32 v10, v24, v25
    v_cvt_pk_bf16_f32 v11, v26, v27
    v_cvt_pk_bf16_f32 v12, v28, v29
    v_cvt_pk_bf16_f32 v13, v30, v31
    v_lshrrev_b32 v8, 5, v0
    v_mul_u32_u24 v8, 320, v8
    v_and_b32 v9, 31, v0
    v_lshl_add_u32 v8, v9, 3, v8
    ds_write_b64 v8, v[10:11] offset:{L_Q}
    ds_write_b64 v8, v[12:13] offset:{L_Q+640}
    s_waitcnt lgkmcnt(0)
    """)
    set_flag(L_FQ)
    stamp(2)
    a("s_branch L_kqk2")
    a(f"""
    L_k1:
    s_lshr_b32 s56, s2, 2
    s_mul_i32 s57, s56, {28*1024}
    s_and_b32 s58, s2, 3
    s_lshl_b32 s59, s58, 8
    s_add_u32 s57, s57, s59
    s_add_u32 s8, s32, s57
    s_addc_u32 s9, s33, 0
    s_and_b32 s9, s9, 0xffff
    s_sub_u32 s10, {1792*1024}, s57
    s_mov_b32 s11, 0x20000
    v_mul_u32_u24 v5, {7*1024}, v1
    v_lshl_add_u32 v5, v2, 4, v5
    s_mov_b32 s60, 4096
    """)
    for j in range(7):
        so, off = ("0", j * 1024) if j < 4 else ("s60", (j - 4) * 1024)
        a(f"buffer_load_dwordx4 v[{64+4*j}:{67+4*j}], v5, s[8:11], {so} offen offset:{off} nt")
    a(f"""
    v_lshrrev_b32 v6, 3, v0
    v_and_b32 v7, 7, v0
    v_min_u32 v7, 6, v7
    v_mul_u32_u24 v5, {7680*4}, v6
    v_lshl_add_u32 v5, v7, 4, v5
    s_mul_i32 s57, s56, 112
    s_add_u32 s60, s57, {WS_P1 + 4096*4}
    """)
    for k in range(1, 4):
        a(f"s_add_u32 s{60+k}, s{59+k}, {P1_KQ}")
    for k in range(4):
        a(f"s_add_u32 s{64+k}, s{60+k}, {1792*4}")
    for r in range(92, 110):
        a(f"v_mov_b32 v{r}, 0")
    a("s_waitcnt vmcnt(0)")
    poll([f"buffer_load_dwordx4 v[{24+4*j}:{27+4*j}], v5, {WS}, s{60+j} offen sc1" for j in range(8)],
         [24 + 4 * j for j in range(8)])
    for hf in range(2):
        b0 = 24 + 16 * hf
        for i in range(4):
            a(f"v_add_f32 v{b0+i}, v{b0+i}, v{b0+4+i}")
            a(f"v_add_f32 v{b0+8+i}, v{b0+8+i}, v{b0+12+i}")
        for i in range(4):
            a(f"v_add_f32 v{b0+i}, v{b0+i}, v{b0+8+i}")
    for i in range(4):
        bf16r(f"v{24+i}", f"v{24+i}")
        bf16r(f"v{40+i}", f"v{40+i}")
    a(f"s_mov_b32 s57, {LOG2E | 0x80000000}")
    for i in range(4):
        a(f"v_mul_f32 v{24+i}, s57, v{24+i}")
    for i in range(4):
        a(f"v_exp_f32 v{24+i}, v{24+i}")
    for i in range(4):
        a(f"v_add_f32 v{24+i}, 1.0, v{24+i}")
    for i in range(4):
        a(f"v_rcp_f32 v{24+i}, v{24+i}")
    for i in range(4):
        bf16r(f"v{24+i}", f"v{24+i}")
    for i in range(4):
        a(f"v_mul_f32 v{24+i}, v{24+i}, v{40+i}")
    for i in range(4):
        bf16r(f"v{24+i}", f"v{24+i}")
    a(f"""
    v_lshlrev_b32 v8, 7, v6
    v_lshl_add_u32 v8, v7, 4, v8
    ds_write_b128 v8, v[24:27] offset:{L_H}
    v_lshrrev_b32 v8, 1, v2
    v_lshlrev_b32 v8, 7, v8
    v_mul_u32_u24 v9, 28, v1
    v_add_u32 v8, v8, v9
    v_and_b32 v9, 1, v0
    v_lshlrev_b32 v9, 4, v9
    v_sub_u32 v9, 16, v9
    """)
    for j in range(7):
        a(f"ds_read_b32 v{28+j}, v8 offset:{L_H + 4*j}")
    a("s_waitcnt lgkmcnt(0)")
    for j in range(7):
        W = 92 + 8 * (j & 1)
        a(f"v_lshrrev_b32 v{W+2}, v9, v{28+j}")
        a(f"v_lshrrev_b32 v{W+7}, v9, v{28+j}")
        for m, st in ((0, 2), (1, 6), (2, 0), (3, 4)):
            c = "0" if j == 0 else f"v[{110+4*m}:{113+4*m}]"
            a(f"v_mfma_f32_16x16x32_bf16 v[{110+4*m}:{113+4*m}], v[{W+st}:{W+st+3}], v[{64+4*j}:{67+4*j}], {c}")
    a(f"""
    v_lshlrev_b32 v5, 18, v1
    v_lshrrev_b32 v6, 1, v2
    v_lshl_add_u32 v5, v6, 12, v5
    v_and_b32 v6, 1, v2
    v_lshl_add_u32 v5, v6, 5, v5
    s_lshl_b32 s57, s58, 15
    s_lshl_b32 s59, s56, 6
    s_add_u32 s57, s57, s59
    s_add_u32 s60, s57, {WS_B}
    s_add_u32 s61, s60, {1 << 17}
    """)
    for beta in range(2):
        for hh in range(2):
            d = 24 + 4 * (beta * 2 + hh)
            src = [110 + 4 * (2 * hh) + 2 * beta, 110 + 4 * (2 * hh) + 2 * beta + 1, 110 + 4 * (2 * hh + 1) + 2 * beta, 110 + 4 * (2 * hh + 1) + 2 * beta + 1]
            for i in range(4):
                a(f"v_bfi_b32 v{d+i}, {vFF}, {sT[i]}, v{src[i]}")
            a(f"buffer_store_dwordx4 v[{d}:{d+3}], v5, {WS}, s{60+beta} offen offset:{hh*16} sc1")
    stamp(2)
    a("s_branch L_kqk")
    a(f"""
    L_k2:
    s_mov_b32 s12, s16
    s_and_b32 s13, s17, 0xffff
    s_mov_b32 s14, 8192
    s_mov_b32 s15, 0x20000
    s_lshl_b32 s56, s2, 5
    v_lshlrev_b32 v5, 3, v1
    buffer_load_dwordx2 v[14:15], v5, s[12:15], s56 offen
    L_kwait:
    s_waitcnt vmcnt(0)
    """)
    a(f"""
    L_kqk:
    v_mov_b32 v9, {L_FQ}
    """)
    lds_spin("v9", 0)
    a(f"""
    L_kqk2:
    v_lshrrev_b32 v6, 2, v2
    v_mul_u32_u24 v5, 320, v6
    v_lshl_add_u32 v5, v1, 4, v5
    v_add_u32 v5, {L_Q}, v5
    v_mov_b32 v8, {L_Z}
    v_and_b32 v7, 3, v0
    """)
    for t4 in range(4):
        a(f"v_cmp_eq_u32 vcc, {t4}, v7")
        a(f"v_cndmask_b32 v{10+(t4&1)}, v8, v5, vcc")
        for s in range(4):
            r = 64 + (t4 * 4 + s) * 4
            a(f"ds_read_b128 v[{r}:{r+3}], v{10+(t4&1)} offset:{s*64}")
    a("s_waitcnt lgkmcnt(0)")
    stamp(3)
    for T in range(2):
        for t4 in range(4):
            for s in range(4):
                kr = 128 + ((T * 4 + t4) * 4 + s) * 4
                br = 64 + (t4 * 4 + s) * 4
                c = "0" if (t4 == 0 and s == 0) else f"v[{16+4*T}:{19+4*T}]"
                a(f"v_mfma_f32_16x16x32_bf16 v[{16+4*T}:{19+4*T}], v[{kr}:{kr+3}], v[{br}:{br+3}], {c}")
    a(f"s_mov_b32 s57, {SCALE}")
    a(f"s_mov_b32 s59, {LOG2E}")
    for rnd in range(2):
        for p in range(4):
            a(f"v_cvt_pk_bf16_f32 v{24+p}, v{16+2*p}, v{17+2*p}")
        for p in range(4):
            a(f"v_lshlrev_b32 v{16+2*p}, 16, v{24+p}")
            a(f"v_and_b32 v{17+2*p}, 0xffff0000, v{24+p}")
        if rnd == 0:
            for i in range(8):
                a(f"v_mul_f32 v{16+i}, s57, v{16+i}")
    a("""
    v_max3_f32 v24, v16, v17, v18
    v_max3_f32 v25, v19, v20, v21
    v_max3_f32 v24, v24, v22, v23
    v_max_f32 v24, v24, v25
    """)
    quad_reduce("v_max_f32", ["v24"])
    swap_reduce("v_max_f32", "v24", "v26")
    a(f"""
    v_mov_b32 v25, 1
    v_lshlrev_b32 v8, 5, v6
    s_lshl_b32 s56, s3, 3
    v_add_u32 v9, s56, v8
    s_mov_b64 exec, 0x1111
    ds_write_b64 v9, v[24:25] offset:{L_MX}
    s_mov_b64 exec, -1
    v_lshl_add_u32 v12, v7, 3, v8
    """)
    lds_spin("v12", L_MX, width=2, dst=26)
    quad_reduce("v_max_f32", ["v26"])
    a("v_mul_f32 v27, s59, v26")
    for i in range(8):
        a(f"v_fma_f32 v{16+i}, v{16+i}, s59, -v27")
    for i in range(8):
        a(f"v_exp_f32 v{16+i}, v{16+i}")
    for p in range(4):
        a(f"v_cvt_pk_bf16_f32 v{28+p}, v{16+2*p}, v{17+2*p}")
    a(f"""
    v_mul_u32_u24 v10, {PSTR}, v6
    v_lshl_add_u32 v10, v7, 5, v10
    v_lshl_add_u32 v10, v1, 3, v10
    s_lshl_b32 s56, s3, 8
    v_add_u32 v10, s56, v10
    ds_write_b64 v10, v[28:29] offset:{L_P}
    ds_write_b64 v10, v[30:31] offset:{L_P+128}
    v_add_f32 v16, v16, v17
    v_add_f32 v18, v18, v19
    v_add_f32 v20, v20, v21
    v_add_f32 v22, v22, v23
    v_add_f32 v16, v16, v18
    v_add_f32 v20, v20, v22
    v_add_f32 v24, v16, v20
    s_waitcnt lgkmcnt(0)
    s_lshl_b32 s56, s3, 2
    s_add_u32 s56, s56, {L_FP}
    v_mov_b32 v11, s56
    s_mov_b64 exec, 1
    ds_write_b32 v11, v25
    s_mov_b64 exec, -1
    """)
    quad_reduce("v_add_f32", ["v24"])
    swap_reduce("v_add_f32", "v24", "v28")
    a(f"""
    s_mov_b64 exec, 0x1111
    ds_write_b64 v9, v[24:25] offset:{L_LS}
    s_mov_b64 exec, -1
    """)
    stamp(4)
    a(f"""
    s_cmp_eq_u32 s3, 2
    s_cbranch_scc1 L_k2b
    s_cmp_lg_u32 s3, 0
    s_cbranch_scc1 L_bar1
    """)
    lds_spin("v12", L_LS, width=2, dst=28)
    quad_reduce("v_add_f32", ["v28"])
    a(f"""
    v_mov_b32 v32, v26
    v_mov_b32 v33, v28
    v_mov_b32 v34, v26
    v_mov_b32 v35, v28
    """)
    tag(32)
    a(f"""
    s_bfe_u32 s56, s2, {(3 << 16) | 2}
    s_lshl_b32 s56, s56, 11
    s_lshr_b32 s57, s2, 5
    s_lshl_b32 s57, s57, 6
    s_add_u32 s56, s56, s57
    s_and_b32 s57, s2, 3
    s_lshl_b32 s57, s57, 4
    s_add_u32 s56, s56, s57
    s_add_u32 s56, s56, {WS_ML}
    v_lshlrev_b32 v8, 9, v6
    s_mov_b64 exec, 0x1111
    buffer_store_dwordx4 v[32:35], v8, {WS}, s56 offen sc1
    s_mov_b64 exec, -1
    s_branch L_bar1
    L_k2b:
    v_lshlrev_b32 v13, 6, v2
    v_lshl_add_u32 v13, v1, 4, v13
    s_lshl_b32 s70, s2, 12
    s_add_u32 s71, s70, {WS_B}
    s_add_u32 s70, s70, {WS_S}
    """)
    for j in range(4):
        a(f"buffer_load_dwordx4 v[{64+4*j}:{67+4*j}], v13, {WS}, s71 offen offset:{j*1024} sc1")
    a("s_branch L_bar1")

    a(f"""
    L_vwave:
    s_setprio 3
    s_and_b32 s59, s2, 3
    s_cmp_lt_u32 s2, 128
    s_movk_i32 s60, 3584
    s_cselect_b32 s60, 8192, s60
    s_cselect_b32 s61, 0, 128
    s_cselect_b32 s62, 0, 4096
    s_cmp_lt_u32 s2, 184
    s_cselect_b32 s61, s61, 184
    s_cselect_b32 s62, s62, 5888
    s_sub_u32 s61, s2, s61
    s_lshr_b32 s61, s61, 2
    s_lshl_b32 s63, s61, 7
    s_add_u32 s62, s62, s63
    s_lshl_b32 s63, s59, 7
    s_lshl_b32 s64, s58, 5
    s_add_u32 s63, s63, s64
    s_mul_i32 s64, s63, s60
    s_lshl_b32 s65, s61, 8
    s_add_u32 s64, s64, s65
    ; x offsets
    v_lshrrev_b32 v6, 1, v2
    v_and_b32 v7, 1, v0
    v_lshlrev_b32 v4, 10, v6
    v_lshl_add_u32 v5, v1, 4, v4
    v_lshl_add_u32 v4, v1, 5, v4
    v_lshl_add_u32 v4, v7, 4, v4
    s_lshl_b32 s65, s63, 1
    v_lshlrev_b32 v8, 3, v1
    v_mul_lo_u32 v8, v8, s60
    v_lshl_add_u32 v8, v2, 4, v8
    s_waitcnt lgkmcnt(0)
    s_load_dword s40, s[38:39], 0
    s_mov_b32 s12, s16
    s_and_b32 s13, s17, 0xffff
    s_mov_b32 s14, 8192
    s_mov_b32 s15, 0x20000
    s_add_u32 s4, s20, s56
    s_addc_u32 s5, s21, 0
    s_and_b32 s5, s5, 0xffff
    s_mov_b32 s6, 32768
    s_mov_b32 s7, 0x20000
    s_cmp_ge_u32 s2, 240
    s_cbranch_scc1 L_vnos1
    s_cmp_lt_u32 s2, 184
    s_cselect_b32 s8, s28, s30
    s_cselect_b32 s9, s29, s31
    s_cmp_lt_u32 s2, 128
    s_cselect_b32 s8, s22, s8
    s_cselect_b32 s9, s23, s9
    s_add_u32 s8, s8, s64
    s_addc_u32 s9, s9, 0
    s_and_b32 s9, s9, 0xffff
    s_lshl_b32 s10, s60, 9
    s_sub_u32 s10, s10, s64
    s_mov_b32 s11, 0x20000
    """)
    for t in range(8):
        a(f"buffer_load_dwordx4 v[{16+4*t}:{19+4*t}], v4, s[12:15], 0 offen offset:{t*128}")
    a("buffer_load_dwordx4 v[48:51], v5, s[12:15], s65 offen")
    a("s_mov_b32 s66, 0")
    for j in range(8):
        a(f"buffer_load_dwordx4 v[{52+4*j}:{55+4*j}], v8, s[8:11], s66 offen nt")
        if j < 7: a("s_add_u32 s66, s66, s60")
    W0 = 128
    for r in range(W0, W0 + 66):
        if (r - W0) % 8 not in (2, 7): a(f"v_mov_b32 v{r}, 0")
    a("""
    v_mov_b32 v10, 0
    v_mov_b32 v11, 0
    v_mov_b32 v12, 0
    v_mov_b32 v13, 0
    s_mov_b32 s66, 0x3f803f80
    s_waitcnt lgkmcnt(0)
    """)
    tags_setup()
    for t in range(8):
        a(f"s_waitcnt vmcnt({16-t})")
        for i in range(4):
            r = 16 + 4 * t + i
            a(f"v_dot2c_f32_bf16 v{10+(i&1)}, s66, v{r}")
            a(f"v_dot2c_f32_bf16 v{12+(i&1)}, v{r}, v{r}")
    stamp(1)
    a("""
    v_add_f32 v10, v10, v11
    v_add_f32 v12, v12, v13
    """)
    for x in ("v10", "v12"):
        a(f"v_add_f32_dpp {x}, {x}, {x} quad_perm:[1,0,3,2] {DPP}")
    swap_reduce("v_add_f32", "v10", "v11")
    swap_reduce("v_add_f32", "v12", "v13")
    a(f"""
    v_mul_f32 v10, {0x3b000000}, v10
    v_mul_f32 v12, {0x3b000000}, v12
    v_fma_f32 v12, -v10, v10, v12
    v_max_f32 v12, 0, v12
    """)
    bf16r("v10", "v10")
    bf16r("v12", "v12")
    a(f"v_add_f32 v12, {0x3727c5ac}, v12")
    bf16r("v12", "v12")
    a("v_sqrt_f32 v12, v12")
    bf16r("v12", "v12")
    a("""
    v_rcp_f32 v12, v12
    v_cmp_eq_u32 vcc, 0, v7
    v_cndmask_b32 v13, 0, v12, vcc
    v_cndmask_b32 v14, v12, 0, vcc
    s_waitcnt vmcnt(8)
    """.replace("v_cndmask_b32 v14, v12, 0, vcc", "v_sub_f32 v14, v12, v13"))
    for p in range(4):
        x = 48 + p
        a(f"""
        v_lshlrev_b32 v16, 16, v{x}
        v_and_b32 v17, 0xffff0000, v{x}
        v_sub_f32 v16, v16, v10
        v_sub_f32 v17, v17, v10
        v_cvt_pk_bf16_f32 v18, v16, v17
        v_lshlrev_b32 v16, 16, v18
        v_and_b32 v17, 0xffff0000, v18
        v_mul_f32 v18, v16, v13
        v_mul_f32 v19, v16, v14
        v_mul_f32 v20, v17, v13
        v_mul_f32 v21, v17, v14
        v_cvt_pk_bf16_f32 v{W0+16*p+2}, v18, v19
        v_cvt_pk_bf16_f32 v{W0+16*p+7}, v18, v19
        v_cvt_pk_bf16_f32 v{W0+16*p+10}, v20, v21
        v_cvt_pk_bf16_f32 v{W0+16*p+15}, v20, v21
        """)
    AC = 196
    for j in range(8):
        W = W0 + 8 * j
        a(f"s_waitcnt vmcnt({7-j})")
        for m, st in ((0, 2), (1, 6), (2, 0), (3, 4)):
            c = "0" if j == 0 else f"v[{AC+4*m}:{AC+4*m+3}]"
            a(f"v_mfma_f32_16x16x32_bf16 v[{AC+4*m}:{AC+4*m+3}], v[{W+st}:{W+st+3}], v[{52+4*j}:{55+4*j}], {c}")
    a(f"""
    s_lshl_b32 s66, s58, 12
    v_lshlrev_b32 v9, 4, v0
    v_add_u32 v8, s66, v9
    """)
    for m in range(4):
        a(f"ds_write_b128 v8, v[{AC+4*m}:{AC+4*m+3}] offset:{L_S1 + m*1024}")
    a(f"""
    s_lshl_b32 s66, s58, 2
    s_add_u32 s66, s66, {L_F1}
    v_mov_b32 v10, s66
    v_mov_b32 v11, 1
    s_waitcnt lgkmcnt(0)
    s_mov_b64 exec, 1
    ds_write_b32 v10, v11
    s_mov_b64 exec, -1
    v_and_b32 v10, 3, v0
    v_lshlrev_b32 v10, 2, v10
    s_and_b32 s66, s58, 1
    s_lshr_b32 s67, s58, 1
    s_lshl_b32 s68, s66, 11
    s_lshl_b32 s69, s67, 3
    s_add_u32 s68, s68, s69
    v_add_u32 v9, s68, v9
    s_lshl_b32 s68, s59, 3
    s_add_u32 s68, s68, s67
    s_mul_i32 s68, s68, 7680
    s_add_u32 s68, s68, s62
    s_lshl_b32 s69, s66, 2
    s_add_u32 s68, s68, s69
    s_lshl_b32 s68, s68, 2
    s_add_u32 s68, s68, {WS_P1}
    v_mul_u32_u24 v12, {2*7680*4}, v1
    v_lshl_add_u32 v12, v2, 5, v12
    """)
    stamp(9)
    lds_spin("v10", L_F1)
    for w in range(4):
        a(f"ds_read_b64 v[{16+4*w}:{17+4*w}], v9 offset:{L_S1 + w*4096}")
        a(f"ds_read_b64 v[{18+4*w}:{19+4*w}], v9 offset:{L_S1 + w*4096 + 1024}")
    a("s_waitcnt lgkmcnt(0)")
    for i in range(4):
        a(f"v_add_f32 v{16+i}, v{16+i}, v{20+i}")
        a(f"v_add_f32 v{24+i}, v{24+i}, v{28+i}")
    for i in range(4):
        a(f"v_add_f32 v{16+i}, v{16+i}, v{24+i}")
    tag(16)
    stamp(11)
    a(f"buffer_store_dwordx4 v[16:19], v12, {WS}, s68 offen sc1")
    stamp(2)
    a(f"""
    s_branch L_vload
    L_vnos1:
    s_waitcnt lgkmcnt(0)
    """)
    tags_setup()
    a(f"""
    L_vload:
    s_setprio 0
    v_lshlrev_b32 v4, 10, v1
    v_lshl_add_u32 v4, v2, 4, v4
    """)
    for t in range(8):
        a(f"s_mov_b32 s{60+t}, {t*4096}")
    for t in range(8):
        for r in range(4):
            reg = 128 + (t * 4 + r) * 4
            a(f"buffer_load_dwordx4 v[{reg}:{reg+3}], v4, s[4:7], s{60+t} offen offset:{r*256} nt")
    a(f"""
    s_lshr_b32 s56, s2, 2
    s_lshl_b32 s56, s56, 16
    s_lshl_b32 s57, s59, 8
    s_add_u32 s56, s56, s57
    s_lshl_b32 s57, s58, 14
    s_add_u32 s56, s56, s57
    s_add_u32 s8, s24, s56
    s_addc_u32 s9, s25, 0
    s_and_b32 s9, s9, 0xffff
    s_sub_u32 s10, {4096*1024}, s56
    s_mov_b32 s11, 0x20000
    v_lshlrev_b32 v5, 1, v1
    v_xor_b32 v5, v5, v2
    v_xor_b32 v6, 8, v5
    v_lshlrev_b32 v5, 4, v5
    v_lshlrev_b32 v6, 4, v6
    v_lshl_add_u32 v5, v1, 10, v5
    v_lshl_add_u32 v6, v1, 10, v6
    s_lshl_b32 s57, s58, 12
    s_add_u32 s57, s57, {L_WO}
    s_mov_b32 m0, s57
    s_mov_b32 s68, 3072
    s_mov_b32 s69, 6144
    s_mov_b32 s70, 9216
    buffer_load_dwordx4 v5, s[8:11], 0 offen nt lds
    buffer_load_dwordx4 v5, s[8:11], s68 offen offset:1024 nt lds
    buffer_load_dwordx4 v6, s[8:11], s69 offen offset:2048 nt lds
    buffer_load_dwordx4 v6, s[8:11], s70 offen offset:3072 nt lds
    """)
    stamp(3)
    a(f"""
    v_and_b32 v7, 3, v0
    v_lshrrev_b32 v6, 2, v2
    v_mov_b32 v8, 0x0c0c0c0c
    """)
    for e4 in range(4):
        a(f"v_cmp_eq_u32 s[{60+2*e4}:{61+2*e4}], {e4}, v7")
    for r in range(4):
        lo = 0x0c0c0000 | ((2 * r + 1) << 8) | (2 * r)
        hi = ((2 * r + 1) << 24) | ((2 * r) << 16) | 0x0c0c
        a(f"""
        v_mov_b32 v9, {lo}
        v_mov_b32 v10, {hi}
        v_cndmask_b32 v{32+2*r}, v8, v9, s[60:61]
        v_cndmask_b32 v{32+2*r}, v{32+2*r}, v10, s[62:63]
        v_cndmask_b32 v{33+2*r}, v8, v9, s[64:65]
        v_cndmask_b32 v{33+2*r}, v{33+2*r}, v10, s[66:67]
        """)
    NW = 8
    XW = 40
    for r in range(XW, XW + 4 * NW + 2):
        if (r - XW) % 4 in (0, 1): a(f"v_mov_b32 v{r}, 0")
    a(f"""
    v_mul_u32_u24 v10, {PSTR}, v6
    v_lshl_add_u32 v10, v1, 3, v10
    s_lshl_b32 s56, s58, 8
    v_add_u32 v10, s56, v10
    s_lshl_b32 s56, s58, 2
    v_mov_b32 v9, s56
    """)
    lds_spin("v9", L_FP)
    for t in range(8):
        a(f"ds_read_b64 v[{16+2*t}:{17+2*t}], v10 offset:{L_P + t*32}")
    a("s_waitcnt lgkmcnt(0)")
    stamp(4)
    OA = 76
    for t in range(8):
        for r in range(4):
            i = t * 4 + r
            W = XW + 4 * (i % NW)
            a(f"v_perm_b32 v{W+2}, v{17+2*t}, v{16+2*t}, v{32+2*r}")
            a(f"v_perm_b32 v{W+3}, v{17+2*t}, v{16+2*t}, v{33+2*r}")
        for r in range(4):
            i = t * 4 + r
            W = XW + 4 * (i % NW)
            reg = 128 + i * 4
            a(f"s_waitcnt vmcnt({35-i})")
            c0 = "0" if i == 0 else f"v[{OA}:{OA+3}]"
            c1 = "0" if i == 0 else f"v[{OA+4}:{OA+7}]"
            a(f"v_mfma_f32_16x16x32_bf16 v[{OA}:{OA+3}], v[{W+2}:{W+5}], v[{reg}:{reg+3}], {c0}")
            a(f"v_mfma_f32_16x16x32_bf16 v[{OA+4}:{OA+7}], v[{W}:{W+3}], v[{reg}:{reg+3}], {c1}")
    a(f"""
    s_lshl_b32 s56, s58, 11
    v_lshlrev_b32 v8, 4, v0
    v_add_u32 v8, s56, v8
    ds_write_b128 v8, v[{OA}:{OA+3}] offset:{L_O}
    ds_write_b128 v8, v[{OA+4}:{OA+7}] offset:{L_O+1024}
    """)
    stamp(5)
    a(f"""
    L_bar1:
    s_setprio 3
    s_lshr_b32 s56, s2, 2
    s_lshl_b32 s57, s56, 13
    s_lshl_b32 s59, s3, 10
    s_add_u32 s60, s57, s59
    s_add_u32 s60, s60, {WS_O}
    v_and_b32 v7, 3, v0
    v_lshrrev_b32 v6, 2, v0
    v_lshlrev_b32 v4, 8, v7
    v_lshl_add_u32 v4, v6, 4, v4
    s_lshr_b32 s57, s2, 3
    s_lshl_b32 s57, s57, 9
    s_lshl_b32 s59, s3, 6
    s_add_u32 s61, s57, s59
    s_add_u32 s61, s61, {WS_ML}
    v_lshlrev_b32 v5, 4, v7
    s_waitcnt lgkmcnt(0)
    s_barrier
    s_cmp_ge_u32 s3, 2
    s_cbranch_scc1 L_hop1
    ; K0/K1 publish O (m = s3)
    s_lshl_b32 s57, s3, 10
    v_lshlrev_b32 v8, 4, v0
    v_add_u32 v8, s57, v8
    """)
    for w in range(4):
        a(f"ds_read_b128 v[{16+4*w}:{19+4*w}], v8 offset:{L_O + w*2048}")
    a(f"""
    s_bfe_u32 s57, s2, {(3 << 16) | 2}
    s_lshl_b32 s57, s57, 16
    s_lshr_b32 s59, s2, 5
    s_lshl_b32 s59, s59, 10
    s_add_u32 s57, s57, s59
    s_and_b32 s59, s2, 3
    s_lshl_b32 s59, s59, 8
    s_add_u32 s57, s57, s59
    s_lshl_b32 s59, s3, 4
    s_add_u32 s57, s57, s59
    s_add_u32 s57, s57, {WS_O}
    v_lshlrev_b32 v9, 14, v1
    v_lshrrev_b32 v10, 3, v2
    v_lshl_add_u32 v9, v10, 13, v9
    v_and_b32 v10, 7, v2
    v_lshl_add_u32 v9, v10, 5, v9
    s_waitcnt lgkmcnt(2)
    """)
    for i in range(4):
        a(f"v_add_f32 v{16+i}, v{16+i}, v{20+i}")
    a("s_waitcnt lgkmcnt(0)")
    for i in range(4):
        a(f"v_add_f32 v{24+i}, v{24+i}, v{28+i}")
    for i in range(4):
        a(f"v_add_f32 v{16+i}, v{16+i}, v{24+i}")
    tag(16)
    a(f"buffer_store_dwordx4 v[16:19], v9, {WS}, s57 offen sc1")
    a("L_hop1:")
    stamp(6)
    a(f"""
    s_mul_i32 s57, s3, {OISTR}
    v_lshl_add_u32 v10, v6, 3, s57
    v_and_b32 v11, 7, v2
    v_mul_u32_u24 v11, {OISTR}, v11
    v_lshl_add_u32 v11, v1, 4, v11
    v_lshrrev_b32 v12, 2, v2
    v_and_b32 v9, 1, v1
    v_lshl_or_b32 v9, v9, 2, v12
    v_xor_b32 v9, s3, v9
    v_lshlrev_b32 v9, 5, v9
    v_lshl_add_u32 v9, v7, 3, v9
    v_lshl_add_u32 v12, v1, 3, v12
    v_lshl_add_u32 v12, v12, 8, v9
    s_and_b32 s57, s2, 3
    s_lshl_b32 s57, s57, 3
    s_add_u32 s57, s57, s3
    s_lshl_b32 s57, s57, 12
    s_lshl_b32 s59, s56, 6
    s_add_u32 s57, s57, s59
    s_add_u32 s62, s57, {WS_S}
    v_lshlrev_b32 v9, 17, v2
    v_lshl_add_u32 v9, v1, 4, v9
    s_mov_b32 s64, 0x11111111
    s_mov_b32 s65, 0x11111111
    s_mov_b32 s66, 0x00ff00ff
    s_mov_b32 s67, 0x00ff00ff
    s_mov_b32 s59, {LOG2E}
    """)
    poll([f"buffer_load_dwordx4 v[20:23], v5, {WS}, s61 offen sc1",
          f"buffer_load_dwordx4 v[16:19], v4, {WS}, s60 offen sc1"], [20, 16])
    stamp(7)
    a(f"""
    v_and_b32 v20, 0xffffff00, v20
    v_max_f32_dpp v24, v20, v20 quad_perm:[1,0,3,2] {DPP}
    v_max_f32_dpp v24, v24, v24 quad_perm:[2,3,0,1] {DPP}
    v_sub_f32 v24, v20, v24
    v_mul_f32 v24, s59, v24
    v_exp_f32 v24, v24
    v_mul_f32 v25, v24, v21
    """)
    for i in range(4):
        a(f"v_mul_f32 v{16+i}, v24, v{16+i}")
    quad_reduce("v_add_f32", ["v25", "v16", "v17", "v18", "v19"])
    a("v_rcp_f32 v25, v25")
    for i in range(4):
        a(f"v_mul_f32 v{16+i}, v25, v{16+i}")
    a(f"""
    v_cvt_pk_bf16_f32 v20, v16, v17
    v_cvt_pk_bf16_f32 v21, v18, v19
    s_mov_b64 exec, s[64:65]
    ds_write_b64 v10, v[20:21] offset:{L_OI}
    s_mov_b64 exec, -1
    s_waitcnt vmcnt(0) lgkmcnt(0)
    s_barrier
    ds_read_b128 v[16:19], v11 offset:{L_OI}
    ds_read_b64_tr_b16 v[24:25], v12 offset:{L_WO}
    ds_read_b64_tr_b16 v[26:27], v12 offset:{L_WO+1024}
    ds_read_b128 v[20:23], v11 offset:{L_OI+64}
    ds_read_b64_tr_b16 v[28:29], v12 offset:{L_WO+8192}
    ds_read_b64_tr_b16 v[30:31], v12 offset:{L_WO+9216}
    s_waitcnt lgkmcnt(3)
    v_mfma_f32_16x16x32_bf16 v[32:35], v[24:27], v[16:19], 0
    s_waitcnt lgkmcnt(0)
    v_mfma_f32_16x16x32_bf16 v[32:35], v[28:31], v[20:23], v[32:35]
    """)
    tag(32)
    a(f"""
    s_mov_b64 exec, s[66:67]
    buffer_store_dwordx4 v[32:35], v9, {WS}, s62 offen sc1
    s_mov_b64 exec, -1
    """)
    stamp(8)
    a(f"""
    s_cmp_lg_u32 s3, 2
    s_cbranch_scc1 L_fin
    """)
    def reduce16(base):
        for i in range(4):
            a(f"v_add_f32 v{base+i}, v{base+i}, v{base+4+i}")
            a(f"v_add_f32 v{base+8+i}, v{base+8+i}, v{base+12+i}")
        for i in range(4):
            a(f"v_add_f32 v{base+i}, v{base+i}, v{base+8+i}")
        for rot in (8, 4, 2, 1):
            for i in range(4):
                a(f"v_add_f32_dpp v{base+i}, v{base+i}, v{base+i} row_ror:{rot} {DPP}")
    for j in range(4):
        a(f"buffer_load_dwordx4 v[{16+4*j}:{19+4*j}], v13, {WS}, s70 offen offset:{j*1024} sc1")
    for j in range(4):
        chk(64 + 4 * j, "v8", j == 0)
    a(f"""
    v_cmp_ne_u32 vcc, 0, v8
    s_cbranch_vccz L_bok
    """)
    poll([f"buffer_load_dwordx4 v[{64+4*j}:{67+4*j}], v13, {WS}, s71 offen offset:{j*1024} sc1" for j in range(4)],
         [64 + 4 * j for j in range(4)])
    a("L_bok:")
    reduce16(64)
    a(f"s_mov_b32 s57, {LOG2E | 0x80000000}")
    for i in range(4):
        bf16r(f"v{64+i}", f"v{64+i}")
    for i in range(4):
        a(f"v_mul_f32 v{68+i}, s57, v{64+i}")
    for i in range(4):
        a(f"v_exp_f32 v{68+i}, v{68+i}")
    for i in range(4):
        a(f"v_add_f32 v{68+i}, 1.0, v{68+i}")
    for i in range(4):
        a(f"v_rcp_f32 v{68+i}, v{68+i}")
    for i in range(4):
        a(f"v_mul_f32 v{64+i}, v{64+i}, v{68+i}")
    for i in range(4):
        bf16r(f"v{64+i}", f"v{64+i}")
    a(f"""
    v_lshlrev_b32 v68, 16, v14
    v_and_b32 v69, 0xffff0000, v14
    v_lshlrev_b32 v70, 16, v15
    v_and_b32 v71, 0xffff0000, v15
    s_mov_b32 s52, s34
    s_and_b32 s53, s35, 0xffff
    s_mov_b32 s54, 8192
    s_mov_b32 s55, 0x20000
    s_lshl_b32 s56, s2, 5
    v_lshlrev_b32 v5, 3, v1
    s_mov_b32 s64, 0x00010001
    s_mov_b32 s65, 0x00010001
    """)
    for j in range(4):
        a(f"s_waitcnt vmcnt({3-j})")
        chk(16 + 4 * j, "v8", j == 0)
    a(f"""
    v_cmp_ne_u32 vcc, 0, v8
    s_cbranch_vccz L_sok
    """)
    poll([f"buffer_load_dwordx4 v[{16+4*j}:{19+4*j}], v13, {WS}, s70 offen offset:{j*1024} sc1" for j in range(4)],
         [16 + 4 * j for j in range(4)])
    a("L_sok:")
    stamp(9)
    reduce16(16)
    for i in range(4):
        bf16r(f"v{16+i}", f"v{16+i}")
    for i in range(4):
        a(f"v_mul_f32 v{16+i}, v{16+i}, v{64+i}")
    for i in range(4):
        bf16r(f"v{16+i}", f"v{16+i}")
    for i in range(4):
        a(f"v_add_f32 v{16+i}, v{16+i}, v{68+i}")
    a(f"""
    v_cvt_pk_bf16_f32 v20, v16, v17
    v_cvt_pk_bf16_f32 v21, v18, v19
    s_mov_b64 exec, s[64:65]
    buffer_store_dwordx2 v[20:21], v5, s[52:55], s56 offen
    s_cmp_lg_u32 s2, 0
    s_cbranch_scc1 L_fin
    v_mov_b32 v8, {sE1}
    v_mov_b32 v9, 0
    s_mov_b64 exec, 1
    buffer_store_dword v8, v9, {WS}, 0 offen sc1
    L_fin:
    """)
    if diag:
        stamp(10)
        a(f"""
        s_waitcnt lgkmcnt(0)
        s_mov_b64 exec, 1
        s_lshl_b32 s56, s2, 10
        s_lshl_b32 s57, s3, 7
        s_add_u32 s56, s56, s57
        s_add_u32 s38, s38, 0x10000000
        s_addc_u32 s39, s39, 0
        v_mov_b32 v4, s56
        """)
        for i in range(12):
            a(f"v_mov_b32 v{8+2*i}, s{72+2*i}")
            a(f"v_mov_b32 v{9+2*i}, s{73+2*i}")
            a(f"global_store_dwordx2 v4, v[{8+2*i}:{9+2*i}], s[38:39] offset:{8*i}")
    a("""
    L_end:
    s_endpgm
    """)
    return wrap(a.text(), 256, 512, L_END, 256)

if __name__ == "__main__":
    open("k1.s", "w").write(gen())
    open("k1_diag.s", "w").write(gen(diag=True))
    print("LDS", L_END)
```

```python
import sys
from asmlib import *

WS_P1 = 0x10000
P1_KQ = 8 * 7680 * 4
WS_O  = 0x100000
WS_ML = 0x180000
WS_HINT = 0x188000
WS_S  = 0x1C0000
WS_B  = 0x2C0000
WS_SIZE = 0x400000
L_S1   = 0
L_WO   = 16384
L_Q    = 32768
QSTR   = 272
L_P    = L_Q + 1280
PW     = 1280
L_O    = L_P + 4 * PW
L_OI   = L_O + 8192
OISTR  = 144
L_H    = L_OI + 8 * OISTR
L_BT   = L_H + 1024
L_FL   = L_BT + 4096
L_MX   = L_FL
L_ST   = L_MX + 256
L_F1   = L_ST + 128
L_FQ   = L_F1 + 16
L_FP   = L_FQ + 16
L_CR   = L_FP + 16
L_FH   = L_CR + 16
L_END  = L_FL + 512
assert L_O % 16 == 0 and L_OI % 16 == 0 and L_H % 16 == 0 and L_FL % 16 == 0

DPP = "row_mask:0xf bank_mask:0xf"
LOG2E = 0x3fb8aa3b
SCALE = 0x3db504f3
sH, sT = "s40", ["s41", "s42", "s43", "s44"]
sE1 = "s45"
WS = "s[48:51]"
vFF = "v3"
QUAD = ["quad_perm:[1,0,3,2]", "quad_perm:[2,3,0,1]"]

def gen(diag=0, **opts):
    o = dict(spin=400000, poll=40000, W=4, thr=33, d1=0, d2=4, hstart=30, wothr=None, hpoll=36, hsleep=2, nohp=1, nohs=1, nob=0, ksl=0, WV=None, seqw=0, stop=0, osl=0, c0=0, touch=0)
    o.update(opts)
    W = o["W"]
    a = Asm()
    def stamp(i):
        if diag == 1: a(f"s_memrealtime s[{72+2*i}:{73+2*i}]")
        if diag == 2: a(f"s_memtime s[{72+2*i}:{73+2*i}]")
    def bf16r(dst, src):
        a(f"v_cvt_pk_bf16_f32 {dst}, {src}, {src}")
        a(f"v_lshlrev_b32 {dst}, 16, {dst}")
    def bf16r_n(regs):
        for r in regs: a(f"v_cvt_pk_bf16_f32 {r}, {r}, {r}")
        for r in regs: a(f"v_lshlrev_b32 {r}, 16, {r}")
    def tag(base):
        for i in range(4):
            a(f"v_bfi_b32 v{base+i}, {vFF}, {sT[i]}, v{base+i}")
    def chk(base, acc, first):
        for i in range(4):
            a(f"v_msad_u8 {acc}, v{base+i}, {sT[i]}, {'0' if (first and i == 0) else acc}")
    def swap_reduce(op, xs, ts):
        for sw in ("v_permlane16_swap_b32", "v_permlane32_swap_b32"):
            for x, t in zip(xs, ts): a(f"v_mov_b32 {t}, {x}")
            for x, t in zip(xs, ts): a(f"{sw} {x}, {t}")
            for x, t in zip(xs, ts): a(f"{op} {x}, {x}, {t}")
    def dpp_reduce(op, xs, ctrls):
        for c in ctrls:
            for x in xs:
                a(f"{op}_dpp {x}, {x}, {x} {c} {DPP}")
    def lds_spin(reads, flags, sleep=1):
        L = a.label("spin"); D = a.label("spind")
        a(f"s_mov_b32 s96, {o['spin']}")
        a(f"{L}:")
        for r in reads: a(r)
        a("s_waitcnt lgkmcnt(0)")
        if len(flags) == 1:
            f = flags[0]
        else:
            a(f"v_and_b32 v8, {flags[0]}, {flags[1]}")
            a(f"v_and_b32 v9, {flags[2]}, {flags[3]}")
            a(f"v_and_b32 v8, v8, v9")
            f = "v8"
        a(f"""
        v_cmp_ne_u32 vcc, 1, {f}
        s_cbranch_vccz {D}
        s_sleep {sleep}
        s_sub_u32 s96, s96, 1
        s_cbranch_scc0 {L}
        {D}:
        """)
    def spin_flag(addr, off, sleep=1):
        lds_spin([f"ds_read_b32 v8, {addr} offset:{off}"], ["v8"], sleep)
    def credit_wait(need, sleep=1):
        L = a.label("cr"); D = a.label("crd")
        a(f"""
        s_mov_b32 s96, {o['spin']}
        {L}:
        ds_read_b32 v8, v15 offset:{L_CR}
        s_waitcnt lgkmcnt(0)
        v_readfirstlane_b32 s97, v8
        s_cmp_ge_i32 s97, {need}
        s_cbranch_scc1 {D}
        {'s_sleep %d' % sleep if sleep else ''}
        s_sub_u32 s96, s96, 1
        s_cbranch_scc0 {L}
        {D}:
        """)
    def post():
        a(f"""
        s_mov_b64 exec, 1
        ds_add_u32 v15, v14 offset:{L_CR}
        s_mov_b64 exec, -1
        """)
    def flag_write(off):
        a(f"""
        v_mov_b32 v9, {off}
        s_mov_b64 exec, 1
        ds_write_b32 v9, v14
        s_mov_b64 exec, -1
        """)
    def tags_setup():
        a(f"""
        s_add_u32 {sE1}, s40, 1
        s_mul_i32 {sH}, {sE1}, 0x9E3779B1
        """)
        for i in range(4):
            a(f"""
            s_bfe_u32 {sT[i]}, {sH}, {(7 << 16) | (7 * i)}
            s_lshl_b32 {sT[i]}, {sT[i]}, 1
            s_or_b32 {sT[i]}, {sT[i]}, 1
            """)
        a(f"""
        s_mov_b32 s48, s38
        s_and_b32 s49, s39, 0xffff
        s_mov_b32 s50, {WS_SIZE}
        s_mov_b32 s51, 0x20000
        """)
    def poll(loads, nreg_bases, acc="v8", sleep=0):
        L = a.label("poll"); D = a.label("polld")
        a(f"s_mov_b32 s96, {o['poll']}")
        a(f"{L}:")
        for l in loads: a(l)
        n = len(loads)
        for i, b in enumerate(nreg_bases):
            a(f"s_waitcnt vmcnt({n-1-i})")
            chk(b, acc, i == 0)
        a(f"""
        v_cmp_ne_u32 vcc, 0, {acc}
        s_cbranch_vccz {D}
        {'s_sleep %d' % sleep if sleep else ''}
        s_sub_u32 s96, s96, 1
        s_cbranch_scc0 {L}
        {D}:
        """)
    def stream_issue(srd, voff, W=W):
        posted = 0
        for k in range(4):
            if k - W >= 0:
                a(f"s_waitcnt vmcnt({(W-1)*8})")
                post(); posted += 1
            else:
                credit_wait("s68")
                a("s_add_i32 s68, s68, 1")
            for i in range(8):
                j = k * 8 + i
                r = 128 + 4 * j
                a(f"buffer_load_dwordx4 v[{r}:{r+3}], {voff}, {srd}, s{60+(j>>2)} offen offset:{(j&3)*1024} nt")
        return posted
    def sum4(b0, stride):
        for i in range(4):
            a(f"v_add_f32 v{b0+i}, v{b0+i}, v{b0+stride+i}")
            a(f"v_add_f32 v{b0+2*stride+i}, v{b0+2*stride+i}, v{b0+3*stride+i}")
        for i in range(4):
            a(f"v_add_f32 v{b0+i}, v{b0+i}, v{b0+2*stride+i}")
    def tail_pre():
        a(f"""
        s_lshr_b32 s56, s2, 2
        s_lshl_b32 s57, s56, 13
        s_lshl_b32 s58, s3, 10
        s_add_u32 s46, s57, s58
        s_add_u32 s46, s46, {WS_O}
        v_and_b32 v90, 3, v0
        v_lshrrev_b32 v8, 2, v0
        v_lshlrev_b32 v84, 8, v90
        v_lshl_add_u32 v84, v8, 4, v84
        s_lshr_b32 s57, s2, 3
        s_lshl_b32 s57, s57, 9
        s_lshl_b32 s58, s3, 6
        s_add_u32 s0, s57, s58
        s_add_u32 s0, s0, {WS_ML}
        v_lshlrev_b32 v85, 4, v90
        s_mul_i32 s57, s3, {OISTR}
        v_lshl_add_u32 v86, v8, 3, s57
        v_and_b32 v87, 7, v2
        v_mul_u32_u24 v87, {OISTR}, v87
        v_lshl_add_u32 v87, v1, 4, v87
        v_lshrrev_b32 v88, 2, v2
        v_and_b32 v9, 1, v1
        v_lshl_or_b32 v9, v9, 2, v88
        v_xor_b32 v9, s3, v9
        v_lshlrev_b32 v9, 5, v9
        v_lshl_add_u32 v9, v90, 3, v9
        v_lshl_add_u32 v88, v1, 3, v88
        v_lshl_add_u32 v88, v88, 8, v9
        s_lshl_b32 s57, s59, 18
        s_lshl_b32 s58, s56, 12
        s_add_u32 s57, s57, s58
        s_lshl_b32 s58, s3, 9
        s_add_u32 s57, s57, s58
        s_add_u32 s1, s57, {WS_S}
        v_lshlrev_b32 v89, 6, v2
        v_lshl_add_u32 v89, v1, 4, v89
        """)

    a(f"""
    s_cmp_ge_u32 s2, 256
    s_cbranch_scc1 L_end
    s_load_dwordx16 s[16:31], s[0:1], 0
    s_load_dwordx8 s[32:39], s[0:1], 64
    v_lshrrev_b32 v4, 6, v0
    v_and_b32 v0, 63, v0
    v_readfirstlane_b32 s3, v4
    v_lshrrev_b32 v1, 4, v0
    v_and_b32 v2, 15, v0
    v_mov_b32 {vFF}, 0xff
    v_mov_b32 v14, 0
    v_mov_b32 v15, 0
    v_lshlrev_b32 v5, 3, v0
    ds_write_b64 v5, v[14:15] offset:{L_FL}
    v_mov_b32 v14, {o['c0']}
    ds_write_b32 v15, v14 offset:{L_CR}
    v_mov_b32 v14, 1
    v_mov_b32 v13, 0
    v_mov_b32 v91, 0
    """)
    stamp(0)
    a(f"""
    s_lshr_b32 s56, s2, 2
    s_lshl_b32 s56, s56, 21
    s_and_b32 s59, s2, 3
    s_lshl_b32 s57, s59, 17
    s_add_u32 s56, s56, s57
    s_add_u32 s56, s56, 0x180000
    s_and_b32 s58, s3, 3
    s_lshl_b32 s57, s58, 15
    s_add_u32 s56, s56, s57
    s_lshl_b32 s68, s3, 2
    s_add_i32 s68, s68, {4 - W + 1}
    s_cmp_ge_u32 s3, 4
    s_cbranch_scc1 L_vwave
    """)
    for t in range(8):
        a(f"s_mov_b32 s{60+t}, {t*4096}")
    a(f"""
    v_lshrrev_b32 v4, 2, v2
    v_lshlrev_b32 v4, 8, v4
    v_and_b32 v7, 3, v0
    v_lshl_add_u32 v4, v7, 4, v4
    v_lshl_add_u32 v4, v1, 6, v4
    s_waitcnt lgkmcnt(0)
    s_barrier
    s_load_dword s40, s[38:39], 0
    s_add_u32 s4, s18, s56
    s_addc_u32 s5, s19, 0
    s_and_b32 s5, s5, 0xffff
    s_mov_b32 s6, 32768
    s_mov_b32 s7, 0x20000
    s_mov_b32 s12, s16
    s_and_b32 s13, s17, 0xffff
    s_mov_b32 s14, 8192
    s_mov_b32 s15, 0x20000
    """)
    if o["touch"]:
        a(f"""
        s_cmp_lg_u32 s3, 2
        s_cbranch_scc1 L_knt
        s_mov_b64 exec, 1
        s_add_u32 s8, s20, s56
        s_addc_u32 s9, s21, 0
        global_load_dword v16, v15, s[8:9]
        s_lshr_b32 s57, s2, 2
        s_lshl_b32 s58, s57, 16
        s_add_u32 s8, s24, s58
        s_addc_u32 s9, s25, 0
        global_load_dword v17, v15, s[8:9]
        s_mul_i32 s58, s57, {28*1024}
        s_add_u32 s8, s32, s58
        s_addc_u32 s9, s33, 0
        global_load_dword v18, v15, s[8:9]
        global_load_dword v19, v15, s[34:35]
        global_load_dword v20, v15, s[38:39] offset:256
        s_add_u32 s8, s38, 0x3ff000
        s_addc_u32 s9, s39, 0
        global_load_dword v21, v15, s[8:9]
        s_mov_b64 exec, -1
        L_knt:
        """)
    a("""
    s_cmp_lg_u32 s3, 3
    s_cbranch_scc1 L_kissue
    """)
    a(f"""
    v_lshrrev_b32 v6, 3, v0
    v_and_b32 v5, 7, v0
    v_lshlrev_b32 v5, 4, v5
    v_lshl_add_u32 v5, v6, 10, v5
    """)
    for t in range(8):
        a(f"buffer_load_dwordx4 v[{16+4*t}:{19+4*t}], v5, s[12:15], 0 offen offset:{t*128}")
    a("""
    v_mov_b32 v10, 0
    v_mov_b32 v11, 0
    v_mov_b32 v12, 0
    v_mov_b32 v48, 0
    s_mov_b32 s69, 0x3f803f80
    v_lshlrev_b32 v6, 4, v6
    s_mov_b32 s70, 0x01010101
    s_mov_b32 s71, 0x01010101
    """)
    for t in range(8):
        a(f"s_waitcnt vmcnt({7-t})")
        for i in range(4):
            r = 16 + 4 * t + i
            a(f"v_dot2c_f32_bf16 {('v10','v11')[i&1]}, s69, v{r}")
            a(f"v_dot2c_f32_bf16 {('v12','v48')[i&1]}, v{r}, v{r}")
    a("""
    v_add_f32 v10, v10, v11
    v_add_f32 v12, v12, v48
    """)
    dpp_reduce("v_add_f32", ["v10", "v12"], QUAD + ["row_half_mirror"])
    a(f"""
    v_mul_f32 v10, {0x3b000000}, v10
    v_mul_f32 v12, {0x3b000000}, v12
    v_fma_f32 v12, -v10, v10, v12
    v_max_f32 v12, 0, v12
    """)
    bf16r("v16", "v10")
    bf16r("v12", "v12")
    a(f"v_add_f32 v12, {0x3727c5ac}, v12")
    bf16r("v12", "v12")
    a("v_sqrt_f32 v12, v12")
    bf16r("v12", "v12")
    a(f"""
    v_rcp_f32 v17, v12
    v_mov_b32 v18, 1
    v_mov_b32 v19, 0
    s_mov_b64 exec, s[70:71]
    ds_write_b128 v6, v[16:19] offset:{L_ST}
    s_mov_b64 exec, -1
    """)
    a("L_kissue:")
    posted = stream_issue("s[4:7]", "v4")
    a("s_waitcnt lgkmcnt(0)")
    tags_setup()
    tail_pre()
    stamp(1)
    for k in range(posted, 4):
        a(f"s_waitcnt vmcnt({24-8*k})")
        post()
    stamp(3)
    a("""
    s_cmp_lg_u32 s3, 0
    s_cbranch_scc1 L_kqk
    """)
    a(f"""
    s_lshr_b32 s56, s2, 5
    s_mul_i32 s56, s56, {7680*4}
    s_bfe_u32 s57, s2, {(3 << 16) | 2}
    s_lshl_b32 s57, s57, 11
    s_add_u32 s56, s56, s57
    s_add_u32 s60, s56, {WS_P1}
    s_add_u32 s61, s60, {P1_KQ}
    s_add_u32 s62, s61, {P1_KQ}
    s_add_u32 s63, s62, {P1_KQ}
    v_lshlrev_b32 v5, 4, v0
    """)
    if o.get("qdelay"): credit_wait(str(o["qdelay"]))
    poll([f"buffer_load_dwordx4 v[{24+4*j}:{27+4*j}], v5, {WS}, s{60+(j>>1)} offen offset:{(j&1)*1024} sc1" for j in range(8)],
         [24 + 4 * j for j in range(8)], sleep=2)
    sum4(24, 8); sum4(28, 8)
    a(f"""
    v_cvt_pk_bf16_f32 v32, v24, v25
    v_cvt_pk_bf16_f32 v33, v26, v27
    v_cvt_pk_bf16_f32 v34, v28, v29
    v_cvt_pk_bf16_f32 v35, v30, v31
    v_lshrrev_b32 v8, 5, v0
    v_mul_u32_u24 v8, {QSTR}, v8
    v_and_b32 v9, 31, v0
    v_lshl_add_u32 v8, v9, 3, v8
    ds_write_b64 v8, v[32:33] offset:{L_Q}
    ds_write_b64 v8, v[34:35] offset:{L_Q+2*QSTR}
    s_waitcnt lgkmcnt(0)
    """)
    flag_write(L_FQ)
    stamp(2)
    a("s_branch L_kqk2")
    a("L_kqk:")
    spin_flag("v15", L_FQ, sleep=2)
    a(f"""
    L_kqk2:
    v_lshrrev_b32 v6, 2, v2
    v_mul_u32_u24 v5, {QSTR}, v7
    v_lshl_add_u32 v5, v1, 6, v5
    v_lshl_add_u32 v5, v6, 4, v5
    ds_read_b128 v[24:27], v5 offset:{L_Q}
    s_mov_b32 s57, {SCALE}
    s_mov_b32 s69, {LOG2E}
    s_waitcnt lgkmcnt(0)
    """)
    stamp(4)
    def extract(T):
        for jj in range(4):
            D = 32 + 16 * (T & 1) + 4 * jj
            for part in range(4):
                rot = (4 * (jj - part)) % 16
                ctrl = f"row_ror:{rot}" if rot else "quad_perm:[0,1,2,3]"
                if part == 0:
                    a(f"v_mov_b32_dpp v{16+T}, v{D} {ctrl} row_mask:0xf bank_mask:{1<<jj:#x}")
                else:
                    a(f"v_add_f32_dpp v{16+T}, v{D+part}, v{16+T} {ctrl} row_mask:0xf bank_mask:{1<<jj:#x}")
    for T in range(8):
        for jj in range(4):
            kr = 128 + (T * 4 + jj) * 4
            D = 32 + 16 * (T & 1) + 4 * jj
            a(f"v_mfma_f32_16x16x32_bf16 v[{D}:{D+3}], v[{kr}:{kr+3}], v[24:27], 0")
        if T > 0: extract(T - 1)
    extract(7)
    for rnd in range(2):
        for p in range(4):
            a(f"v_cvt_pk_bf16_f32 v{24+p}, v{16+2*p}, v{17+2*p}")
        for p in range(4):
            a(f"v_lshlrev_b32 v{16+2*p}, 16, v{24+p}")
            a(f"v_and_b32 v{17+2*p}, 0xffff0000, v{24+p}")
        if rnd == 0:
            for i in range(8):
                a(f"v_mul_f32 v{16+i}, s57, v{16+i}")
    a("""
    v_max3_f32 v28, v16, v17, v18
    v_max3_f32 v25, v19, v20, v21
    v_max3_f32 v28, v28, v22, v23
    v_max_f32 v28, v28, v25
    """)
    dpp_reduce("v_max_f32", ["v28"], ["row_ror:4", "row_ror:8"])
    swap_reduce("v_max_f32", ["v28"], ["v26"])
    a("v_mul_f32 v27, s69, v28")
    for i in range(8):
        a(f"v_fma_f32 v{16+i}, v{16+i}, s69, -v27")
    for i in range(8):
        a(f"v_exp_f32 v{16+i}, v{16+i}")
    for p in range(4):
        a(f"v_cvt_pk_bf16_f32 v{32+p}, v{16+2*p}, v{17+2*p}")
    a(f"""
    v_lshl_add_u32 v10, v7, 2, v1
    v_mul_u32_u24 v10, 80, v10
    v_lshl_add_u32 v10, v6, 4, v10
    s_mul_i32 s56, s3, {PW}
    v_add_u32 v10, s56, v10
    ds_write_b128 v10, v[32:35] offset:{L_P}
    v_add_f32 v16, v16, v17
    v_add_f32 v18, v18, v19
    v_add_f32 v20, v20, v21
    v_add_f32 v22, v22, v23
    v_add_f32 v16, v16, v18
    v_add_f32 v20, v20, v22
    v_add_f32 v29, v16, v20
    s_lshl_b32 s56, s3, 2
    s_add_u32 s56, s56, {L_FP}
    """)
    flag_write("s56")
    dpp_reduce("v_add_f32", ["v29"], ["row_ror:4", "row_ror:8"])
    swap_reduce("v_add_f32", ["v29"], ["v26"])
    a(f"""
    v_mov_b32 v30, 1
    v_mov_b32 v31, 0
    v_lshlrev_b32 v8, 6, v7
    s_lshl_b32 s56, s3, 4
    v_add_u32 v8, s56, v8
    s_mov_b64 exec, 0xf
    ds_write_b128 v8, v[28:31] offset:{L_MX}
    s_mov_b64 exec, -1
    """)
    stamp(5)
    a(f"""
    s_cmp_eq_u32 s3, 2
    s_cbranch_scc1 L_k2b
    s_cmp_eq_u32 s3, 3
    s_cbranch_scc1 L_k3b
    s_cmp_eq_u32 s3, 0
    s_cbranch_scc1 L_kfac
    """)
    a(f"""
    s_lshr_b32 s56, s2, 2
    s_mul_i32 s57, s56, {28*1024}
    s_lshl_b32 s58, s59, 8
    s_add_u32 s57, s57, s58
    s_add_u32 s8, s32, s57
    s_addc_u32 s9, s33, 0
    s_and_b32 s9, s9, 0xffff
    s_sub_u32 s10, {1792*1024}, s57
    s_mov_b32 s11, 0x20000
    v_mul_u32_u24 v5, {7*1024}, v1
    v_lshl_add_u32 v5, v2, 4, v5
    s_mov_b32 s60, 4096
    """)
    for j in range(7):
        so, off = ("0", j * 1024) if j < 4 else ("s60", (j - 4) * 1024)
        a(f"buffer_load_dwordx4 v[{128+4*j}:{131+4*j}], v5, s[8:11], {so} offen offset:{off} nt")
    a(f"""
    v_lshrrev_b32 v6, 3, v0
    v_and_b32 v7, 7, v0
    v_min_u32 v7, 6, v7
    v_mul_u32_u24 v5, {7680*4}, v6
    v_lshl_add_u32 v5, v7, 4, v5
    s_mul_i32 s57, s56, 112
    s_add_u32 s60, s57, {WS_P1 + 4096*4}
    """)
    for k in range(1, 4):
        a(f"s_add_u32 s{60+k}, s{59+k}, {P1_KQ}")
    for k in range(4):
        a(f"s_add_u32 s{64+k}, s{60+k}, {1792*4}")
    HW = 160; HA = 180
    for r in range(HW, HW + 18):
        a(f"v_mov_b32 v{r}, 0")
    poll([f"buffer_load_dwordx4 v[{24+4*j}:{27+4*j}], v5, {WS}, s{60+j} offen sc1" for j in range(8)],
         [24 + 4 * j for j in range(8)], sleep=2)
    sum4(24, 4); sum4(40, 4)
    bf16r_n([f"v{24+i}" for i in range(4)] + [f"v{40+i}" for i in range(4)])
    a(f"s_mov_b32 s57, {LOG2E | 0x80000000}")
    G = [f"v{24+i}" for i in range(4)]
    for x in G: a(f"v_mul_f32 {x}, s57, {x}")
    for x in G: a(f"v_exp_f32 {x}, {x}")
    for x in G: a(f"v_add_f32 {x}, 1.0, {x}")
    for x in G: a(f"v_rcp_f32 {x}, {x}")
    bf16r_n(G)
    for i in range(4): a(f"v_mul_f32 v{24+i}, v{24+i}, v{40+i}")
    bf16r_n(G)
    a(f"""
    v_lshlrev_b32 v8, 7, v6
    v_lshl_add_u32 v8, v7, 4, v8
    ds_write_b128 v8, v[24:27] offset:{L_H}
    v_lshrrev_b32 v8, 1, v2
    v_lshlrev_b32 v8, 7, v8
    v_mul_u32_u24 v9, 28, v1
    v_add_u32 v8, v8, v9
    v_and_b32 v9, 1, v0
    v_lshlrev_b32 v9, 4, v9
    v_sub_u32 v9, 16, v9
    """)
    for j in range(7):
        a(f"ds_read_b32 v{28+j}, v8 offset:{L_H + 4*j}")
    a("s_waitcnt lgkmcnt(0)")
    for j in range(7):
        Wd = HW + 8 * (j & 1)
        a(f"v_lshrrev_b32 v{Wd+2}, v9, v{28+j}")
        a(f"v_lshrrev_b32 v{Wd+7}, v9, v{28+j}")
        for m, st in ((0, 2), (1, 6), (2, 0), (3, 4)):
            c = "0" if j == 0 else f"v[{HA+4*m}:{HA+4*m+3}]"
            a(f"v_mfma_f32_16x16x32_bf16 v[{HA+4*m}:{HA+4*m+3}], v[{Wd+st}:{Wd+st+3}], v[{128+4*j}:{131+4*j}], {c}")
    a(f"""
    v_lshrrev_b32 v6, 1, v2
    v_lshlrev_b32 v5, 9, v6
    v_lshl_add_u32 v5, v1, 7, v5
    v_and_b32 v6, 1, v2
    v_lshl_add_u32 v5, v6, 5, v5
    s_lshl_b32 s57, s59, 18
    s_lshl_b32 s58, s56, 12
    s_add_u32 s57, s57, s58
    s_add_u32 s60, s57, {WS_B}
    v_lshlrev_b32 v6, 4, v0
    """)
    for beta in range(2):
        for hh in range(2):
            d = 24 + 4 * (beta * 2 + hh)
            src = [HA + 8 * hh + 2 * beta, HA + 8 * hh + 2 * beta + 1, HA + 8 * hh + 4 + 2 * beta, HA + 8 * hh + 4 + 2 * beta + 1]
            for i in range(4):
                a(f"v_bfi_b32 v{d+i}, {vFF}, {sT[i]}, v{src[i]}")
            a(f"ds_write_b128 v5, v[{d}:{d+3}] offset:{L_BT + beta*64 + hh*16}")
    for j in range(4):
        a(f"ds_read_b128 v[{40+4*j}:{43+4*j}], v6 offset:{L_BT + j*1024}")
    for j in range(4):
        a(f"s_waitcnt lgkmcnt({3-j})")
        a(f"buffer_store_dwordx4 v[{40+4*j}:{43+4*j}], v6, {WS}, s60 offen offset:{j*1024} sc1")
    flag_write(L_FH)
    stamp(2)
    a(f"""
    L_kfac:
    v_lshrrev_b32 v6, 5, v0
    s_lshl_b32 s56, s3, 1
    v_add_u32 v6, s56, v6
    v_lshlrev_b32 v10, 6, v6
    """)
    lds_spin([f"ds_read_b128 v[{16+4*j}:{19+4*j}], v10 offset:{L_MX+16*j}" for j in range(4)], ["v18", "v22", "v26", "v30"], sleep=4)
    a(f"""
    v_max3_f32 v32, v16, v20, v24
    v_max_f32 v32, v32, v28
    s_mov_b32 s69, {LOG2E}
    """)
    for j in range(4): a(f"v_sub_f32 v{60+j}, v{16+4*j}, v32")
    for j in range(4): a(f"v_mul_f32 v{60+j}, s69, v{60+j}")
    for j in range(4): a(f"v_exp_f32 v{60+j}, v{60+j}")
    a(f"""
    v_mul_f32 v33, v60, v17
    v_fmac_f32 v33, v61, v21
    v_fmac_f32 v33, v62, v25
    v_fmac_f32 v33, v63, v29
    v_mov_b32 v34, v32
    v_mov_b32 v35, v33
    """)
    tag(32)
    a(f"""
    s_bfe_u32 s56, s2, {(3 << 16) | 2}
    s_lshl_b32 s56, s56, 11
    s_lshr_b32 s57, s2, 5
    s_lshl_b32 s57, s57, 6
    s_add_u32 s56, s56, s57
    s_lshl_b32 s57, s59, 4
    s_add_u32 s56, s56, s57
    s_add_u32 s56, s56, {WS_ML}
    v_lshlrev_b32 v8, 9, v6
    s_mov_b32 s70, 1
    s_mov_b32 s71, 1
    s_mov_b64 exec, s[70:71]
    buffer_store_dwordx4 v[32:35], v8, {WS}, s56 offen sc1
    s_mov_b64 exec, -1
    v_and_b32 v8, 1, v0
    v_lshlrev_b32 v64, 10, v8
    v_lshl_add_u32 v64, v6, 8, v64
    v_and_b32 v8, 1, v1
    v_lshl_add_u32 v64, v8, 7, v64
    v_lshrrev_b32 v9, 1, v2
    v_lshl_add_u32 v64, v9, 4, v64
    v_lshlrev_b32 v65, 14, v6
    v_lshl_add_u32 v65, v8, 13, v65
    v_lshl_add_u32 v65, v2, 4, v65
    s_bfe_u32 s57, s2, {(3 << 16) | 2}
    s_lshl_b32 s57, s57, 16
    s_lshr_b32 s58, s2, 5
    s_lshl_b32 s58, s58, 10
    s_add_u32 s57, s57, s58
    s_lshl_b32 s58, s59, 8
    s_add_u32 s57, s57, s58
    s_add_u32 s47, s57, {WS_O}
    """)
    credit_wait("34", sleep=4)
    credit_wait("36", sleep=o["ksl"])
    stamp(11)
    for w in range(4):
        a(f"ds_read_b128 v[{16+4*w}:{19+4*w}], v64 offset:{L_O + w*2048}")
    for w in range(4):
        a(f"s_waitcnt lgkmcnt({3-w})")
        for i in range(4):
            if w == 0: a(f"v_mul_f32 v{16+i}, v60, v{16+i}")
            else: a(f"v_fmac_f32 v{16+i}, v{60+w}, v{16+4*w+i}")
    tag(16)
    a(f"buffer_store_dwordx4 v[16:19], v65, {WS}, s47 offen sc1")
    stamp(9)
    a("s_branch L_bar1")
    a(f"""
    L_k2b:
    s_lshl_b32 s56, s2, 5
    s_bfe_u32 s70, s2, {(2 << 16) | 3}
    s_lshl_b32 s70, s70, 18
    s_and_b32 s71, s2, 7
    s_lshl_b32 s71, s71, 9
    s_add_u32 s70, s70, s71
    s_lshr_b32 s71, s2, 5
    s_lshl_b32 s71, s71, 6
    s_add_u32 s70, s70, s71
    s_add_u32 s98, s70, {WS_S}
    s_add_u32 s99, s98, 0x10000
    s_add_u32 s100, s98, 0x20000
    s_add_u32 s101, s98, 0x30000
    s_add_u32 s52, s70, {WS_B}
    s_add_u32 s53, s52, 0x10000
    s_add_u32 s54, s52, 0x20000
    s_add_u32 s55, s52, 0x30000
    v_lshlrev_b32 v91, 3, v90
    buffer_load_dwordx2 v[80:81], v91, s[12:15], s56 offen
    v_lshrrev_b32 v13, 2, v0
    v_lshlrev_b32 v13, 12, v13
    v_lshl_add_u32 v13, v90, 4, v13
    s_mov_b32 s4, s34
    s_and_b32 s5, s35, 0xffff
    s_mov_b32 s6, 8192
    s_mov_b32 s7, 0x20000
    s_mov_b32 s63, {WS_HINT}
    v_lshlrev_b32 v46, 4, v0
    """)
    def reduce16(base):
        sum4(base, 4)
        dpp_reduce("v_add_f32", [f"v{base+i}" for i in range(4)], [f"row_ror:{r}" for r in (8, 4)])
        swap_reduce("v_add_f32", [f"v{base+i}" for i in range(4)], [f"v{base+4+i}" for i in range(4)])
    def gate():
        reduce16(64)
        a(f"s_mov_b32 s57, {LOG2E | 0x80000000}")
        Bv = [f"v{64+i}" for i in range(4)]
        bf16r_n(Bv)
        for i in range(4): a(f"v_mul_f32 v{72+i}, s57, v{64+i}")
        for i in range(4): a(f"v_exp_f32 v{72+i}, v{72+i}")
        for i in range(4): a(f"v_add_f32 v{72+i}, 1.0, v{72+i}")
        for i in range(4): a(f"v_rcp_f32 v{72+i}, v{72+i}")
        for i in range(4): a(f"v_mul_f32 v{64+i}, v{64+i}, v{72+i}")
        bf16r_n(Bv)
        a(f"""
        v_lshlrev_b32 v68, 16, v80
        v_and_b32 v69, 0xffff0000, v80
        v_lshlrev_b32 v70, 16, v81
        v_and_b32 v71, 0xffff0000, v81
        """)
    BL = [f"buffer_load_dwordx4 v[{64+4*j}:{67+4*j}], v13, {WS}, s{52+j} offen sc1" for j in range(4)]
    credit_wait(str(o["hstart"]), sleep=4)
    if o["nob"]:
        a("v_mov_b32 v8, 0")
    else:
      for l in BL: a(l)
      for j in range(4):
        a(f"s_waitcnt vmcnt({3-j})")
        chk(64 + 4 * j, "v8", j == 0)
    a("""
    s_mov_b32 s62, 0
    v_cmp_ne_u32 vcc, 0, v8
    s_cbranch_vccnz L_k2c
    s_mov_b32 s62, 1
    """)
    gate()
    a("L_k2c:")
    stamp(2)
    credit_wait("35", sleep=2)
    credit_wait(str(o["hpoll"]), sleep=0)
    a(f"""
    {'s_branch L_hpd' if o['nohp'] else ''}
    s_mov_b32 s96, {o['poll']}
    L_hp:
    buffer_load_dwordx4 v[16:19], v46, {WS}, s63 offen sc1
    s_waitcnt vmcnt(0)
    v_xor_b32 v16, {sH}, v16
    v_xor_b32 v17, {sH}, v17
    v_xor_b32 v18, {sH}, v18
    v_xor_b32 v19, {sH}, v19
    v_or3_b32 v16, v16, v17, v18
    v_or_b32 v16, v16, v19
    v_cmp_ne_u32 vcc, 0, v16
    s_cbranch_vccz L_hpd
    s_sleep {o['hsleep']}
    s_sub_u32 s96, s96, 1
    s_cbranch_scc0 L_hp
    L_hpd:
    """)
    stamp(11)
    if o["d1"]: a(f"s_sleep {o['d1']}")
    a("s_branch L_bar1")
    a(f"""
    L_k3b:
    s_lshr_b32 s56, s2, 2
    s_lshl_b32 s56, s56, 16
    s_lshl_b32 s57, s59, 8
    s_add_u32 s56, s56, s57
    s_add_u32 s8, s24, s56
    s_addc_u32 s9, s25, 0
    s_and_b32 s9, s9, 0xffff
    s_sub_u32 s10, {4096*1024}, s56
    s_mov_b32 s11, 0x20000
    v_lshlrev_b32 v5, 1, v1
    v_xor_b32 v5, v5, v2
    v_xor_b32 v6, 8, v5
    v_lshlrev_b32 v5, 4, v5
    v_lshlrev_b32 v6, 4, v6
    v_lshl_add_u32 v5, v1, 10, v5
    v_lshl_add_u32 v6, v1, 10, v6
    s_lshl_b32 s69, s2, 2
    s_add_u32 s69, s69, {WS_HINT}
    v_mov_b32 v16, {sH}
    """)
    wot = o["wothr"] or (36 - (o['WV'] or W) + 1)
    evs = sorted([(wot, 1, 0), (min(wot + 1, 36), 1, 2), (o["thr"], 0, -1)])
    credit_wait(str(min(evs[0][0], 32) - 3), sleep=4)
    for thr_, kind, grp0 in evs:
        credit_wait(str(thr_))
        if kind == 0:
            a(f"""
            s_mov_b64 exec, 1
            {'' if o['nohs'] else 'buffer_store_dword v16, v15, ' + WS + ', s69 offen sc1'}
            s_mov_b64 exec, -1
            """)
            stamp(11)
            continue
        for grp in (grp0, grp0 + 1):
            a(f"s_mov_b32 m0, {L_WO + grp*4096}")
            for q in range(4):
                a(f"s_mov_b32 s{60+q}, {grp*16384 + q*3072}")
            for q in range(4):
                a(f"buffer_load_dwordx4 {'v5' if q < 2 else 'v6'}, s[8:11], s{60+q} offen offset:{q*1024} nt lds")
    stamp(2)
    a("s_branch L_bar1")

    a(f"""
    L_vwave:
    s_cmp_lt_u32 s2, 128
    s_movk_i32 s60, 3584
    s_cselect_b32 s60, 8192, s60
    s_cselect_b32 s61, 0, 128
    s_cselect_b32 s62, 0, 4096
    s_cmp_lt_u32 s2, 184
    s_cselect_b32 s61, s61, 184
    s_cselect_b32 s62, s62, 5888
    s_sub_u32 s61, s2, s61
    s_lshr_b32 s61, s61, 2
    s_lshl_b32 s63, s61, 7
    s_add_u32 s62, s62, s63
    s_lshl_b32 s63, s59, 7
    s_lshl_b32 s64, s58, 5
    s_add_u32 s63, s63, s64
    s_mul_i32 s64, s63, s60
    s_lshl_b32 s65, s61, 8
    s_add_u32 s64, s64, s65
    v_lshrrev_b32 v6, 1, v2
    v_and_b32 v7, 1, v0
    v_lshlrev_b32 v4, 10, v6
    v_lshl_add_u32 v5, v1, 4, v4
    s_lshl_b32 s65, s63, 1
    v_lshlrev_b32 v10, 3, v1
    v_mul_lo_u32 v10, v10, s60
    v_lshl_add_u32 v10, v2, 4, v10
    STAMP9
    s_waitcnt lgkmcnt(0)
    STAMP11
    s_barrier
    s_load_dword s40, s[38:39], 0
    s_mov_b32 s12, s16
    s_and_b32 s13, s17, 0xffff
    s_mov_b32 s14, 8192
    s_mov_b32 s15, 0x20000
    s_add_u32 s4, s20, s56
    s_addc_u32 s5, s21, 0
    s_and_b32 s5, s5, 0xffff
    s_mov_b32 s6, 32768
    s_mov_b32 s7, 0x20000
    s_mov_b32 s71, s58
    s_cmp_ge_u32 s2, 240
    s_cbranch_scc1 L_vnos1
    s_cmp_lt_u32 s2, 184
    s_cselect_b32 s8, s28, s30
    s_cselect_b32 s9, s29, s31
    s_cmp_lt_u32 s2, 128
    s_cselect_b32 s8, s22, s8
    s_cselect_b32 s9, s23, s9
    s_add_u32 s8, s8, s64
    s_addc_u32 s9, s9, 0
    s_and_b32 s9, s9, 0xffff
    s_lshl_b32 s10, s60, 9
    s_sub_u32 s10, s10, s64
    s_mov_b32 s11, 0x20000
    buffer_load_dwordx4 v[48:51], v5, s[12:15], s65 offen
    s_mov_b32 s66, 0
    """)
    if o["seqw"]:
        a("""
        s_sub_u32 s8, s56, 0x180000
        s_add_u32 s8, s18, s8
        s_addc_u32 s9, s19, 0
        s_and_b32 s9, s9, 0xffff
        s_mov_b32 s10, 32768
        s_mov_b32 s60, 1024
        v_lshlrev_b32 v10, 4, v0
        """)
    for j in range(8):
        a(f"buffer_load_dwordx4 v[{52+4*j}:{55+4*j}], v10, s[8:11], s66 offen nt")
        if j < 7: a("s_add_u32 s66, s66, s60")
    stamp(7)
    W0 = 128
    for r in range(W0, W0 + 66):
        if (r - W0) % 8 not in (2, 7): a(f"v_mov_b32 v{r}, 0")
    a(f"""
    v_lshlrev_b32 v10, 4, v6
    s_waitcnt lgkmcnt(0)
    """)
    tags_setup()
    a(f"""
    s_lshl_b32 s66, s58, 12
    v_lshlrev_b32 v9, 4, v0
    v_add_u32 v11, s66, v9
    v_lshrrev_b32 v44, 5, v0
    v_and_b32 v45, 31, v0
    v_lshlrev_b32 v12, 11, v7
    v_lshrrev_b32 v46, 1, v45
    v_lshl_add_u32 v12, v46, 4, v12
    v_lshl_add_u32 v12, v44, 3, v12
    s_lshl_b32 s66, s58, 8
    v_add_u32 v12, s66, v12
    s_lshl_b32 s66, s59, 3
    s_lshl_b32 s67, s58, 1
    s_add_u32 s66, s66, s67
    s_mul_i32 s66, s66, 7680
    s_add_u32 s66, s66, s62
    s_lshl_b32 s66, s66, 2
    s_add_u32 s69, s66, {WS_P1}
    v_mul_u32_u24 v47, {7680*4}, v44
    v_lshl_add_u32 v47, v45, 4, v47
    s_lshl_b32 s70, s58, 2
    s_add_u32 s70, s70, {L_F1}
    v_and_b32 v44, 3, v0
    v_lshlrev_b32 v44, 2, v44
    s_waitcnt vmcnt(0)
    s_cmp_lt_u32 s58, {o['c0']}
    s_cbranch_scc1 L_vnp
    """)
    post()
    a("L_vnp:")
    stamp(1)
    lds_spin([f"ds_read_b128 v[16:19], v10 offset:{L_ST}"], ["v18"])
    a("""
    v_cmp_eq_u32 vcc, 0, v7
    v_cndmask_b32 v22, 0, v17, vcc
    v_sub_f32 v23, v17, v22
    """)
    AC = 196
    for p in range(4):
        x = 48 + p
        a(f"""
        v_lshlrev_b32 v24, 16, v{x}
        v_and_b32 v25, 0xffff0000, v{x}
        v_sub_f32 v24, v24, v16
        v_sub_f32 v25, v25, v16
        v_cvt_pk_bf16_f32 v26, v24, v25
        v_lshlrev_b32 v24, 16, v26
        v_and_b32 v25, 0xffff0000, v26
        v_mul_f32 v26, v24, v22
        v_mul_f32 v27, v24, v23
        v_mul_f32 v28, v25, v22
        v_mul_f32 v29, v25, v23
        v_cvt_pk_bf16_f32 v{W0+16*p+2}, v26, v27
        v_cvt_pk_bf16_f32 v{W0+16*p+7}, v26, v27
        v_cvt_pk_bf16_f32 v{W0+16*p+10}, v28, v29
        v_cvt_pk_bf16_f32 v{W0+16*p+15}, v28, v29
        """)
        for j in (2 * p, 2 * p + 1):
            Wd = W0 + 8 * j
            for m, st in ((0, 2), (1, 6), (2, 0), (3, 4)):
                c = "0" if j == 0 else f"v[{AC+4*m}:{AC+4*m+3}]"
                a(f"v_mfma_f32_16x16x32_bf16 v[{AC+4*m}:{AC+4*m+3}], v[{Wd+st}:{Wd+st+3}], v[{52+4*j}:{55+4*j}], {c}")
    for m in range(4):
        a(f"ds_write_b128 v11, v[{AC+4*m}:{AC+4*m+3}] offset:{L_S1 + m*1024}")
    flag_write("s70")
    spin_flag("v44", L_F1)
    for w in range(4):
        a(f"ds_read_b64 v[{16+4*w}:{17+4*w}], v12 offset:{L_S1 + w*4096}")
        a(f"ds_read_b64 v[{18+4*w}:{19+4*w}], v12 offset:{L_S1 + w*4096 + 1024}")
    a("s_waitcnt lgkmcnt(0)")
    sum4(16, 4)
    tag(16)
    a(f"buffer_store_dwordx4 v[16:19], v47, {WS}, s69 offen sc1")
    stamp(2)
    a(f"""
    s_branch L_vload
    L_vnos1:
    s_waitcnt lgkmcnt(0)
    s_cmp_lt_u32 s58, {o['c0']}
    s_cbranch_scc1 L_vnp2
    """)
    post()
    a("L_vnp2:")
    tags_setup()
    a(f"""
    L_vload:
    v_lshlrev_b32 v4, 4, v0
    """)
    tail_pre()
    for t in range(8):
        a(f"s_mov_b32 s{60+t}, {t*4096}")
    a(f"""
    v_and_b32 v7, 3, v0
    v_lshrrev_b32 v6, 2, v2
    v_mov_b32 v10, 0x0c0c0c0c
    """)
    for tb in range(2):
        lo = 0x0c0c0000 | ((2 * tb + 1) << 8) | (2 * tb)
        hi = ((2 * tb + 1) << 24) | ((2 * tb) << 16) | 0x0c0c
        a(f"""
        v_mov_b32 v11, {lo}
        v_mov_b32 v12, {hi}
        v_cmp_eq_u32 vcc, 0, v7
        v_cndmask_b32 v{32+2*tb}, v10, v11, vcc
        v_cmp_eq_u32 vcc, 1, v7
        v_cndmask_b32 v{32+2*tb}, v{32+2*tb}, v12, vcc
        v_cmp_eq_u32 vcc, 2, v7
        v_cndmask_b32 v{33+2*tb}, v10, v11, vcc
        v_cmp_eq_u32 vcc, 3, v7
        v_cndmask_b32 v{33+2*tb}, v{33+2*tb}, v12, vcc
        """)
    NW = 8
    XW = 40
    for r in range(XW, XW + 4 * NW + 2):
        if (r - XW) % 4 in (0, 1): a(f"v_mov_b32 v{r}, 0")
    a(f"""
    v_lshl_add_u32 v10, v6, 2, v1
    v_mul_u32_u24 v10, 80, v10
    s_mul_i32 s56, s71, {PW}
    v_add_u32 v10, s56, v10
    s_lshl_b32 s56, s71, 2
    v_mov_b32 v11, s56
    s_lshl_b32 s56, s71, 11
    v_lshlrev_b32 v12, 4, v0
    v_add_u32 v12, s56, v12
    s_sub_i32 s68, s68, {(o['WV'] or W) - W}
    s_sub_i32 s70, s68, 4
    """)
    credit_wait("s70", sleep=4)
    posted = stream_issue("s[4:7]", "v4", o['WV'] or W)
    stamp(3)
    spin_flag("v11", L_FP)
    for jj in range(4):
        a(f"ds_read_b128 v[{16+4*jj}:{19+4*jj}], v10 offset:{L_P + jj*16}")
    a("s_waitcnt lgkmcnt(0)")
    stamp(4)
    OA = 76
    def mkx(j):
        T, jj = j >> 2, j & 3
        Wd = XW + 4 * (j % NW)
        r = 16 + 4 * jj + (T >> 1)
        a(f"v_perm_b32 v{Wd+2}, v{r}, v{r}, v{32+2*(T&1)}")
        a(f"v_perm_b32 v{Wd+3}, v{r}, v{r}, v{33+2*(T&1)}")
    for j in range(4): mkx(j)
    for j in range(32):
        Wd = XW + 4 * (j % NW)
        reg = 128 + j * 4
        a(f"s_waitcnt vmcnt({31-j})")
        if j % 8 == 7 and j // 8 >= posted and j < 31: post()
        c0 = "0" if j == 0 else f"v[{OA}:{OA+3}]"
        c1 = "0" if j == 0 else f"v[{OA+4}:{OA+7}]"
        a(f"v_mfma_f32_16x16x32_bf16 v[{OA}:{OA+3}], v[{Wd+2}:{Wd+5}], v[{reg}:{reg+3}], {c0}")
        a(f"v_mfma_f32_16x16x32_bf16 v[{OA+4}:{OA+7}], v[{Wd}:{Wd+3}], v[{reg}:{reg+3}], {c1}")
        if j + 4 < 32: mkx(j + 4)
    a(f"""
    ds_write_b128 v12, v[{OA}:{OA+3}] offset:{L_O}
    ds_write_b128 v12, v[{OA+4}:{OA+7}] offset:{L_O+1024}
    """)
    post()
    stamp(5)
    a(f"""
    L_bar1:
    s_mov_b32 s64, 0x11111111
    s_mov_b32 s65, 0x11111111
    s_mov_b32 s66, 0x00ff00ff
    s_mov_b32 s67, 0x00ff00ff
    s_mov_b32 s69, {LOG2E}
    s_barrier
    """)
    stamp(6)
    if o["stop"]: a("s_branch L_fin")
    poll([f"buffer_load_dwordx4 v[20:23], v85, {WS}, s0 offen sc1",
          f"buffer_load_dwordx4 v[16:19], v84, {WS}, s46 offen sc1"], [20, 16], sleep=o["osl"])
    if not o.get("early"): stamp(7)
    a(f"""
    v_and_b32 v20, 0xffffff00, v20
    v_max_f32_dpp v24, v20, v20 quad_perm:[1,0,3,2] {DPP}
    v_max_f32_dpp v24, v24, v24 quad_perm:[2,3,0,1] {DPP}
    v_sub_f32 v24, v20, v24
    v_mul_f32 v24, s69, v24
    v_exp_f32 v24, v24
    v_mul_f32 v25, v24, v21
    """)
    for i in range(4):
        a(f"v_mul_f32 v{16+i}, v24, v{16+i}")
    dpp_reduce("v_add_f32", ["v25", "v16", "v17", "v18", "v19"], QUAD)
    a("v_rcp_f32 v25, v25")
    for i in range(4):
        a(f"v_mul_f32 v{16+i}, v25, v{16+i}")
    a(f"""
    v_cvt_pk_bf16_f32 v20, v16, v17
    v_cvt_pk_bf16_f32 v21, v18, v19
    s_mov_b64 exec, s[64:65]
    ds_write_b64 v86, v[20:21] offset:{L_OI}
    s_mov_b64 exec, -1
    s_waitcnt vmcnt(0) lgkmcnt(0)
    s_barrier
    ds_read_b128 v[16:19], v87 offset:{L_OI}
    ds_read_b64_tr_b16 v[24:25], v88 offset:{L_WO}
    ds_read_b64_tr_b16 v[26:27], v88 offset:{L_WO+1024}
    ds_read_b128 v[20:23], v87 offset:{L_OI+64}
    ds_read_b64_tr_b16 v[28:29], v88 offset:{L_WO+8192}
    ds_read_b64_tr_b16 v[30:31], v88 offset:{L_WO+9216}
    s_waitcnt lgkmcnt(3)
    v_mfma_f32_16x16x32_bf16 v[32:35], v[24:27], v[16:19], 0
    s_waitcnt lgkmcnt(0)
    v_mfma_f32_16x16x32_bf16 v[32:35], v[28:31], v[20:23], v[32:35]
    """)
    tag(32)
    a(f"""
    s_mov_b64 exec, s[66:67]
    buffer_store_dwordx4 v[32:35], v89, {WS}, s1 offen sc1
    s_mov_b64 exec, -1
    """)
    stamp(8)
    a(f"""
    s_cmp_lg_u32 s3, 2
    s_cbranch_scc1 L_fin
    """)
    a("""
    s_cmp_eq_u32 s62, 1
    s_cbranch_scc1 L_gok
    """)
    poll(BL, [64 + 4 * j for j in range(4)])
    gate()
    a("L_gok:")
    if o["d2"]: a(f"s_sleep {o['d2']}")
    poll([f"buffer_load_dwordx4 v[{16+4*j}:{19+4*j}], v13, {WS}, s{98+j} offen sc1" for j in range(4)],
         [16 + 4 * j for j in range(4)])
    stamp(9)
    reduce16(16)
    Sv = [f"v{16+i}" for i in range(4)]
    bf16r_n(Sv)
    for i in range(4): a(f"v_mul_f32 v{16+i}, v{16+i}, v{64+i}")
    bf16r_n(Sv)
    for i in range(4): a(f"v_add_f32 v{16+i}, v{16+i}, v{68+i}")
    a(f"""
    v_cvt_pk_bf16_f32 v20, v16, v17
    v_cvt_pk_bf16_f32 v21, v18, v19
    s_lshl_b32 s56, s2, 5
    s_mov_b64 exec, 0xf
    buffer_store_dwordx2 v[20:21], v91, s[4:7], s56 offen
    s_cmp_lg_u32 s2, 0
    s_cbranch_scc1 L_fin
    v_mov_b32 v8, {sE1}
    s_mov_b64 exec, 1
    buffer_store_dword v8, v15, {WS}, 0 offen sc1
    L_fin:
    """)
    if diag:
        stamp(10)
        a(f"""
        s_waitcnt lgkmcnt(0)
        s_mov_b64 exec, 1
        s_lshl_b32 s56, s2, 10
        s_lshl_b32 s57, s3, 7
        s_add_u32 s56, s56, s57
        s_add_u32 s38, s38, 0x10000000
        s_addc_u32 s39, s39, 0
        v_mov_b32 v4, s56
        """)
        a("s_getreg_b32 s57, hwreg(HW_REG_XCC_ID)")
        a("s_getreg_b32 s58, hwreg(HW_REG_HW_ID)")
        a("v_mov_b32 v50, s57")
        a("v_mov_b32 v51, s58")
        a("global_store_dwordx2 v4, v[50:51], s[38:39] offset:120")
        for i in range(12):
            a(f"v_mov_b32 v{16+2*i}, s{72+2*i}")
            a(f"v_mov_b32 v{17+2*i}, s{73+2*i}")
            a(f"global_store_dwordx2 v4, v[{16+2*i}:{17+2*i}], s[38:39] offset:{8*i}")
    a("""
    L_end:
    s_endpgm
    """)
    a.lines = [(f"s_memrealtime s[{72+2*int(l[5:])}:{73+2*int(l[5:])}]" if diag == 1 else "s_nop 0") if l.startswith("STAMP") else l for l in a.lines]
    return wrap(a.text(), 256, 512, L_END, 256)

if __name__ == "__main__":
    open("k3.s", "w").write(gen(d2=10, c0=2))
    V = {"k3_diag": dict(), "k3_early": dict(early=1), "k3_early2": dict(early=1)}
    for k, v in V.items():
        d = dict(diag=1, d2=10, c0=2); d.update(v)
        open(k + ".s", "w").write(gen(**d))
    print(" ".join(k + ".s" for k in V)); print(", ".join('"dev/%s.s"' % k for k in V))
```

```python
import sys
from asmlib import *

WS_P1 = 0x10000
P1_KQ = 8 * 7680 * 4
WS_O  = 0x100000
WS_ML = 0x180000
WS_OL = 0x3C0000 - 0x3C0000 + 0x400000
WS_S  = 0x1C0000
WS_B  = 0x2C0000
WS_SIZE = 0x480000
L_S1   = 0
L_WO   = 16384
L_Q    = 32768
QSTR   = 272
L_P    = L_Q + 1280
PW     = 1280
L_O    = L_P + 4 * PW
L_OI   = L_O + 8192
OISTR  = 144
L_H    = L_OI + 8 * OISTR
L_BT   = L_H + 1024
L_FL   = L_BT + 4096
L_MX   = L_FL
L_ST   = L_MX + 256
L_F1   = L_ST + 128
L_FQ   = L_F1 + 16
L_FP   = L_FQ + 16
L_CR   = L_FP + 16
L_FH   = L_CR + 16
L_WT   = L_FL + 512
L_END  = L_WT + 256
assert L_O % 16 == 0 and L_OI % 16 == 0 and L_H % 16 == 0 and L_FL % 16 == 0

DPP = "row_mask:0xf bank_mask:0xf"
LOG2E = 0x3fb8aa3b
SCALE = 0x3db504f3
sH, sT = "s40", ["s41", "s42", "s43", "s44"]
sE1 = "s45"
WS = "s[48:51]"
vFF = "v3"
QUAD = ["quad_perm:[1,0,3,2]", "quad_perm:[2,3,0,1]"]

def gen(diag=0, **opts):
    o = dict(spin=400000, poll=40000, W=4, thr=35, d1=0, d2=4, hstart=32, wothr=None, hpoll=38, hsleep=2, nohp=1, nohs=1, nob=0, ksl=0, WV=None, seqw=0, stop=0, osl=0, c0=0, touch=0, xt=0, xtv=None, remap=1, mlstart=32, local=1, pre=0, k0e=1, pdec=1, rot=32, sloc=1)
    o.update(opts)
    W = o["W"]
    a = Asm()
    def stamp(i):
        if diag == 1: a(f"s_memrealtime s[{72+2*i}:{73+2*i}]")
        if diag == 2: a(f"s_memtime s[{72+2*i}:{73+2*i}]")
    def bf16r(dst, src):
        a(f"v_cvt_pk_bf16_f32 {dst}, {src}, {src}")
        a(f"v_lshlrev_b32 {dst}, 16, {dst}")
    def bf16r_n(regs):
        for r in regs: a(f"v_cvt_pk_bf16_f32 {r}, {r}, {r}")
        for r in regs: a(f"v_lshlrev_b32 {r}, 16, {r}")
    def tag(base):
        for i in range(4):
            a(f"v_bfi_b32 v{base+i}, {vFF}, {sT[i]}, v{base+i}")
    def chk(base, acc, first):
        for i in range(4):
            a(f"v_msad_u8 {acc}, v{base+i}, {sT[i]}, {'0' if (first and i == 0) else acc}")
    def swap_reduce(op, xs, ts):
        for sw in ("v_permlane16_swap_b32", "v_permlane32_swap_b32"):
            for x, t in zip(xs, ts): a(f"v_mov_b32 {t}, {x}")
            for x, t in zip(xs, ts): a(f"{sw} {x}, {t}")
            for x, t in zip(xs, ts): a(f"{op} {x}, {x}, {t}")
    def dpp_reduce(op, xs, ctrls):
        for c in ctrls:
            for x in xs:
                a(f"{op}_dpp {x}, {x}, {x} {c} {DPP}")
    def lds_spin(reads, flags, sleep=1):
        L = a.label("spin"); D = a.label("spind")
        a(f"s_mov_b32 s96, {o['spin']}")
        a(f"{L}:")
        for r in reads: a(r)
        a("s_waitcnt lgkmcnt(0)")
        if len(flags) == 1:
            f = flags[0]
        else:
            a(f"v_and_b32 v8, {flags[0]}, {flags[1]}")
            a(f"v_and_b32 v9, {flags[2]}, {flags[3]}")
            a(f"v_and_b32 v8, v8, v9")
            f = "v8"
        a(f"""
        v_cmp_ne_u32 vcc, 1, {f}
        s_cbranch_vccz {D}
        s_sleep {sleep}
        s_sub_u32 s96, s96, 1
        s_cbranch_scc0 {L}
        {D}:
        """)
    def spin_flag(addr, off, sleep=1):
        lds_spin([f"ds_read_b32 v8, {addr} offset:{off}"], ["v8"], sleep)
    def credit_wait(need, sleep=1):
        L = a.label("cr"); D = a.label("crd")
        a(f"""
        s_mov_b32 s96, {o['spin']}
        {L}:
        ds_read_b32 v8, v15 offset:{L_CR}
        s_waitcnt lgkmcnt(0)
        v_readfirstlane_b32 s97, v8
        s_cmp_ge_i32 s97, {need}
        s_cbranch_scc1 {D}
        {'s_sleep %d' % sleep if sleep else ''}
        s_sub_u32 s96, s96, 1
        s_cbranch_scc0 {L}
        {D}:
        """)
    def post(inc="v14"):
        a(f"""
        s_mov_b64 exec, 1
        ds_add_u32 v15, {inc} offset:{L_CR}
        s_mov_b64 exec, -1
        """)
    def flag_write(off):
        a(f"""
        v_mov_b32 v9, {off}
        s_mov_b64 exec, 1
        ds_write_b32 v9, v14
        s_mov_b64 exec, -1
        """)
    def tags_setup():
        a(f"""
        s_add_u32 {sE1}, s40, 1
        s_mul_i32 {sH}, {sE1}, 0x9E3779B1
        """)
        for i in range(4):
            a(f"""
            s_bfe_u32 {sT[i]}, {sH}, {(7 << 16) | (7 * i)}
            s_lshl_b32 {sT[i]}, {sT[i]}, 1
            s_or_b32 {sT[i]}, {sT[i]}, 1
            """)
        a(f"""
        s_mov_b32 s48, s38
        s_and_b32 s49, s39, 0xffff
        s_mov_b32 s50, {WS_SIZE}
        s_mov_b32 s51, 0x20000
        """)
    def poll(loads, nreg_bases, acc="v8", sleep=0):
        L = a.label("poll"); D = a.label("polld")
        a(f"s_mov_b32 s96, {o['poll']}")
        a(f"{L}:")
        for l in loads: a(l)
        n = len(loads)
        for i, b in enumerate(nreg_bases):
            a(f"s_waitcnt vmcnt({n-1-i})")
            chk(b, acc, i == 0)
        a(f"""
        v_cmp_ne_u32 vcc, 0, {acc}
        s_cbranch_vccz {D}
        {'s_sleep %d' % sleep if sleep else ''}
        s_sub_u32 s96, s96, 1
        s_cbranch_scc0 {L}
        {D}:
        """)
    def batch(srd, voff, k):
        for i in range(8):
            j = k * 8 + i
            r = 128 + 4 * j
            a(f"buffer_load_dwordx4 v[{r}:{r+3}], {voff}, {srd}, s{60+(j>>2)} offen offset:{(j&3)*1024} nt")
    def stream_issue(srd, voff, W=W, lab=None):
        posted = 0
        for k in range(4):
            if lab and k == o["k0e"]: a(f"{lab}:")
            if k - W >= 0:
                a(f"s_waitcnt vmcnt({(W-1)*8})")
                post(); posted += 1
            else:
                credit_wait("s68")
                a("s_add_i32 s68, s68, 1")
            for i in range(8):
                j = k * 8 + i
                r = 128 + 4 * j
                a(f"buffer_load_dwordx4 v[{r}:{r+3}], {voff}, {srd}, s{60+(j>>2)} offen offset:{(j&3)*1024} nt")
        return posted
    def sum4(b0, stride):
        for i in range(4):
            a(f"v_add_f32 v{b0+i}, v{b0+i}, v{b0+stride+i}")
            a(f"v_add_f32 v{b0+2*stride+i}, v{b0+2*stride+i}, v{b0+3*stride+i}")
        for i in range(4):
            a(f"v_add_f32 v{b0+i}, v{b0+i}, v{b0+2*stride+i}")
    def tail_pre():
        a(f"""
        s_lshr_b32 s56, s2, 2
        s_lshl_b32 s57, s56, 13
        s_lshl_b32 s58, s3, 10
        s_add_u32 s46, s57, s58
        s_add_u32 s46, s46, {WS_O}
        v_and_b32 v90, 3, v0
        v_lshrrev_b32 v8, 2, v0
        v_lshlrev_b32 v84, 8, v90
        v_lshl_add_u32 v84, v8, 4, v84
        s_lshl_b32 s58, s3, 4
        v_lshl_add_u32 v85, v90, 2, s58
        s_lshl_b32 s57, s59, 1
        s_lshr_b32 s58, s3, 2
        s_add_u32 s57, s57, s58
        s_lshr_b32 s58, s2, 5
        s_cmp_lg_u32 s57, s58
        s_cselect_b32 s0, 1, {0 if o['sloc'] else 1}
        s_mul_i32 s57, s3, {OISTR}
        v_lshl_add_u32 v86, v8, 3, s57
        v_and_b32 v87, 7, v2
        v_mul_u32_u24 v87, {OISTR}, v87
        v_lshl_add_u32 v87, v1, 4, v87
        v_lshrrev_b32 v88, 2, v2
        v_and_b32 v9, 1, v1
        v_lshl_or_b32 v9, v9, 2, v88
        v_xor_b32 v9, s3, v9
        v_lshlrev_b32 v9, 5, v9
        v_lshl_add_u32 v9, v90, 3, v9
        v_lshl_add_u32 v88, v1, 3, v88
        v_lshl_add_u32 v88, v88, 8, v9
        s_lshl_b32 s57, s59, 18
        s_lshl_b32 s58, s56, 12
        s_add_u32 s57, s57, s58
        s_lshl_b32 s58, s3, 9
        s_add_u32 s57, s57, s58
        s_add_u32 s1, s57, {WS_S}
        v_lshlrev_b32 v89, 6, v2
        v_lshl_add_u32 v89, v1, 4, v89
        """)

    a(f"""
    s_cmp_ge_u32 s2, 256
    s_cbranch_scc1 L_end
    s_load_dwordx16 s[16:31], s[0:1], 0
    s_load_dwordx8 s[32:39], s[0:1], 64
    {'s_and_b32 s3, s2, 7' if o['remap'] else ''}
    {'s_lshr_b32 s2, s2, 3' if o['remap'] else ''}
    {'s_lshl_b32 s3, s3, 5' if o['remap'] else ''}
    {'s_or_b32 s2, s2, s3' if o['remap'] else ''}
    v_lshrrev_b32 v4, 6, v0
    v_and_b32 v0, 63, v0
    v_readfirstlane_b32 s3, v4
    v_lshrrev_b32 v1, 4, v0
    v_and_b32 v2, 15, v0
    v_mov_b32 {vFF}, 0xff
    v_mov_b32 v14, 0
    v_mov_b32 v15, 0
    v_lshlrev_b32 v5, 3, v0
    ds_write_b64 v5, v[14:15] offset:{L_FL}
    v_mov_b32 v14, 1
    v_mov_b32 v13, 0
    v_mov_b32 v91, 0
    """)
    stamp(0)
    a(f"""
    s_bfe_u32 s56, s2, {(3 << 16) | 2}
    s_lshl_b32 s56, s56, 24
    s_lshr_b32 s57, s2, 5
    s_lshl_b32 s57, s57, 21
    s_add_u32 s56, s56, s57
    s_and_b32 s59, s2, 3
    s_lshl_b32 s57, s59, 17
    s_add_u32 s56, s56, s57
    s_add_u32 s56, s56, 0x180000
    s_and_b32 s58, s3, 3
    s_lshl_b32 s57, s58, 15
    s_add_u32 s56, s56, s57
    s_lshl_b32 s68, s3, 2
    s_add_i32 s68, s68, {6 - W + 1}
    s_and_b32 s57, s2, 7
    s_lshl_b32 s57, s57, 2
    s_cmp_ge_u32 s3, 4
    s_mov_b32 s69, {o['xt']}
    s_cselect_b32 s69, {o['xt'] if o['xtv'] is None else o['xtv']}, s69
    s_lshr_b32 s57, s69, s57
    s_and_b32 s57, s57, 15
    s_sub_i32 s68, s68, s57
    s_cmp_ge_u32 s3, 4
    s_cbranch_scc1 L_vwave
    """)
    for t in range(8):
        a(f"s_mov_b32 s{60+t}, {t*4096}")
    a(f"""
    v_lshrrev_b32 v4, 2, v2
    v_lshlrev_b32 v4, 8, v4
    v_and_b32 v7, 3, v0
    v_lshl_add_u32 v4, v7, 4, v4
    v_lshl_add_u32 v4, v1, 6, v4
    v_lshrrev_b32 v6, 3, v0
    v_and_b32 v5, 7, v0
    v_lshlrev_b32 v5, 4, v5
    v_lshl_add_u32 v5, v6, 10, v5
    s_mov_b32 s6, 32768
    s_mov_b32 s7, 0x20000
    s_mov_b32 s14, 8192
    s_mov_b32 s15, 0x20000
    s_waitcnt lgkmcnt(0)
    s_add_u32 s4, s18, s56
    s_addc_u32 s5, s19, 0
    s_and_b32 s5, s5, 0xffff
    s_mov_b32 s12, s16
    s_and_b32 s13, s17, 0xffff
    s_load_dword s40, s[38:39], 0
    s_cmp_eq_u32 s3, 3
    s_cbranch_scc1 L_k3a
    s_cmp_lg_u32 s3, 0
    s_cbranch_scc1 L_k12
    """)
    for k in range(o["k0e"]): batch("s[4:7]", "v4", k)
    a(f"""
    s_add_i32 s68, s68, {o["k0e"]}
    s_barrier
    s_branch L_kissue0
    L_k12:
    s_barrier
    s_branch L_kissue
    L_k3a:
    """)
    for t in range(8):
        a(f"buffer_load_dwordx4 v[{16+4*t}:{19+4*t}], v5, s[12:15], 0 offen offset:{t*128}")
    a("s_barrier")
    a("""
    v_mov_b32 v10, 0
    v_mov_b32 v11, 0
    v_mov_b32 v12, 0
    v_mov_b32 v48, 0
    s_mov_b32 s69, 0x3f803f80
    v_lshlrev_b32 v6, 4, v6
    s_mov_b32 s70, 0x01010101
    s_mov_b32 s71, 0x01010101
    """)
    for t in range(8):
        a(f"s_waitcnt vmcnt({7-t})")
        for i in range(4):
            r = 16 + 4 * t + i
            a(f"v_dot2c_f32_bf16 {('v10','v11')[i&1]}, s69, v{r}")
            a(f"v_dot2c_f32_bf16 {('v12','v48')[i&1]}, v{r}, v{r}")
    a("""
    v_add_f32 v10, v10, v11
    v_add_f32 v12, v12, v48
    """)
    dpp_reduce("v_add_f32", ["v10", "v12"], QUAD + ["row_half_mirror"])
    a(f"""
    v_mul_f32 v10, {0x3b000000}, v10
    v_mul_f32 v12, {0x3b000000}, v12
    v_fma_f32 v12, -v10, v10, v12
    v_max_f32 v12, 0, v12
    """)
    bf16r("v16", "v10")
    bf16r("v12", "v12")
    a(f"v_add_f32 v12, {0x3727c5ac}, v12")
    bf16r("v12", "v12")
    a("v_sqrt_f32 v12, v12")
    bf16r("v12", "v12")
    a(f"""
    v_rcp_f32 v17, v12
    v_mov_b32 v18, 1
    v_mov_b32 v19, 0
    s_mov_b64 exec, s[70:71]
    ds_write_b128 v6, v[16:19] offset:{L_ST}
    s_mov_b64 exec, -1
    """)
    a("L_kissue:")
    posted = stream_issue("s[4:7]", "v4", lab="L_kissue0")
    a("s_waitcnt lgkmcnt(0)")
    tags_setup()
    tail_pre()
    stamp(1)
    for k in range(posted, 4):
        a(f"s_waitcnt vmcnt({24-8*k})")
        post()
    stamp(3)
    a("""
    s_cmp_lg_u32 s3, 0
    s_cbranch_scc1 L_kqk
    """)
    a(f"""
    s_bfe_u32 s56, s2, {(3 << 16) | 2}
    s_mul_i32 s56, s56, {7680*4}
    s_lshr_b32 s57, s2, 5
    s_lshl_b32 s57, s57, 11
    s_add_u32 s56, s56, s57
    s_add_u32 s60, s56, {WS_P1}
    s_add_u32 s61, s60, {P1_KQ}
    s_add_u32 s62, s61, {P1_KQ}
    s_add_u32 s63, s62, {P1_KQ}
    v_lshlrev_b32 v5, 4, v0
    """)
    if o.get("qdelay"): credit_wait(str(o["qdelay"]))
    poll([f"buffer_load_dwordx4 v[{24+4*j}:{27+4*j}], v5, {WS}, s{60+(j>>1)} offen offset:{(j&1)*1024} sc1" for j in range(8)],
         [24 + 4 * j for j in range(8)], sleep=2)
    sum4(24, 8); sum4(28, 8)
    a(f"""
    v_cvt_pk_bf16_f32 v32, v24, v25
    v_cvt_pk_bf16_f32 v33, v26, v27
    v_cvt_pk_bf16_f32 v34, v28, v29
    v_cvt_pk_bf16_f32 v35, v30, v31
    v_lshrrev_b32 v8, 5, v0
    v_mul_u32_u24 v8, {QSTR}, v8
    v_and_b32 v9, 31, v0
    v_lshl_add_u32 v8, v9, 3, v8
    ds_write_b64 v8, v[32:33] offset:{L_Q}
    ds_write_b64 v8, v[34:35] offset:{L_Q+2*QSTR}
    s_waitcnt lgkmcnt(0)
    """)
    flag_write(L_FQ)
    stamp(2)
    a("s_branch L_kqk2")
    a("L_kqk:")
    spin_flag("v15", L_FQ, sleep=2)
    a(f"""
    L_kqk2:
    v_lshrrev_b32 v6, 2, v2
    v_mul_u32_u24 v5, {QSTR}, v7
    v_lshl_add_u32 v5, v1, 6, v5
    v_lshl_add_u32 v5, v6, 4, v5
    ds_read_b128 v[24:27], v5 offset:{L_Q}
    s_mov_b32 s57, {SCALE}
    s_mov_b32 s69, {LOG2E}
    s_waitcnt lgkmcnt(0)
    """)
    stamp(4)
    def extract(T):
        for jj in range(4):
            D = 32 + 16 * (T & 1) + 4 * jj
            for part in range(4):
                rot = (4 * (jj - part)) % 16
                ctrl = f"row_ror:{rot}" if rot else "quad_perm:[0,1,2,3]"
                if part == 0:
                    a(f"v_mov_b32_dpp v{16+T}, v{D} {ctrl} row_mask:0xf bank_mask:{1<<jj:#x}")
                else:
                    a(f"v_add_f32_dpp v{16+T}, v{D+part}, v{16+T} {ctrl} row_mask:0xf bank_mask:{1<<jj:#x}")
    for T in range(8):
        for jj in range(4):
            kr = 128 + (T * 4 + jj) * 4
            D = 32 + 16 * (T & 1) + 4 * jj
            a(f"v_mfma_f32_16x16x32_bf16 v[{D}:{D+3}], v[{kr}:{kr+3}], v[24:27], 0")
        if T > 0: extract(T - 1)
    extract(7)
    for rnd in range(2):
        for p in range(4):
            a(f"v_cvt_pk_bf16_f32 v{24+p}, v{16+2*p}, v{17+2*p}")
        for p in range(4):
            a(f"v_lshlrev_b32 v{16+2*p}, 16, v{24+p}")
            a(f"v_and_b32 v{17+2*p}, 0xffff0000, v{24+p}")
        if rnd == 0:
            for i in range(8):
                a(f"v_mul_f32 v{16+i}, s57, v{16+i}")
    a("""
    v_max3_f32 v28, v16, v17, v18
    v_max3_f32 v25, v19, v20, v21
    v_max3_f32 v28, v28, v22, v23
    v_max_f32 v28, v28, v25
    """)
    dpp_reduce("v_max_f32", ["v28"], ["row_ror:4", "row_ror:8"])
    swap_reduce("v_max_f32", ["v28"], ["v26"])
    a("v_mul_f32 v27, s69, v28")
    for i in range(8):
        a(f"v_fma_f32 v{16+i}, v{16+i}, s69, -v27")
    for i in range(8):
        a(f"v_exp_f32 v{16+i}, v{16+i}")
    for p in range(4):
        a(f"v_cvt_pk_bf16_f32 v{32+p}, v{16+2*p}, v{17+2*p}")
    a(f"""
    v_lshl_add_u32 v10, v7, 2, v1
    v_mul_u32_u24 v10, 80, v10
    v_lshl_add_u32 v10, v6, 4, v10
    s_mul_i32 s56, s3, {PW}
    v_add_u32 v10, s56, v10
    ds_write_b128 v10, v[32:35] offset:{L_P}
    v_add_f32 v16, v16, v17
    v_add_f32 v18, v18, v19
    v_add_f32 v20, v20, v21
    v_add_f32 v22, v22, v23
    v_add_f32 v16, v16, v18
    v_add_f32 v20, v20, v22
    v_add_f32 v29, v16, v20
    s_lshl_b32 s56, s3, 2
    s_add_u32 s56, s56, {L_FP}
    """)
    flag_write("s56")
    dpp_reduce("v_add_f32", ["v29"], ["row_ror:4", "row_ror:8"])
    swap_reduce("v_add_f32", ["v29"], ["v26"])
    a(f"""
    v_mov_b32 v30, 1
    v_mov_b32 v31, 0
    v_lshlrev_b32 v8, 6, v7
    s_lshl_b32 s56, s3, 4
    v_add_u32 v8, s56, v8
    s_mov_b64 exec, 0xf
    ds_write_b128 v8, v[28:31] offset:{L_MX}
    s_mov_b64 exec, -1
    """)
    stamp(5)
    a(f"""
    s_cmp_eq_u32 s3, 2
    s_cbranch_scc1 L_k2b
    s_cmp_eq_u32 s3, 3
    s_cbranch_scc1 L_k3b
    s_cmp_eq_u32 s3, 0
    s_cbranch_scc1 L_kfac
    """)
    a(f"""
    s_lshr_b32 s56, s2, 2
    s_mul_i32 s57, s56, {28*1024}
    s_lshl_b32 s58, s59, 8
    s_add_u32 s57, s57, s58
    s_add_u32 s8, s32, s57
    s_addc_u32 s9, s33, 0
    s_and_b32 s9, s9, 0xffff
    s_sub_u32 s10, {1792*1024}, s57
    s_mov_b32 s11, 0x20000
    v_mul_u32_u24 v5, {7*1024}, v1
    v_lshl_add_u32 v5, v2, 4, v5
    s_mov_b32 s60, 4096
    """)
    for j in range(7):
        so, off = ("0", j * 1024) if j < 4 else ("s60", (j - 4) * 1024)
        a(f"buffer_load_dwordx4 v[{128+4*j}:{131+4*j}], v5, s[8:11], {so} offen offset:{off} nt")
    a(f"""
    v_lshrrev_b32 v6, 3, v0
    v_and_b32 v7, 7, v0
    v_min_u32 v7, 6, v7
    v_mul_u32_u24 v5, {7680*4}, v6
    v_lshl_add_u32 v5, v7, 4, v5
    s_mul_i32 s57, s56, 112
    s_add_u32 s60, s57, {WS_P1 + 4096*4}
    """)
    for k in range(1, 4):
        a(f"s_add_u32 s{60+k}, s{59+k}, {P1_KQ}")
    for k in range(4):
        a(f"s_add_u32 s{64+k}, s{60+k}, {1792*4}")
    HW = 160; HA = 180
    for r in range(HW, HW + 18):
        a(f"v_mov_b32 v{r}, 0")
    poll([f"buffer_load_dwordx4 v[{24+4*j}:{27+4*j}], v5, {WS}, s{60+j} offen sc1" for j in range(8)],
         [24 + 4 * j for j in range(8)], sleep=2)
    sum4(24, 4); sum4(40, 4)
    bf16r_n([f"v{24+i}" for i in range(4)] + [f"v{40+i}" for i in range(4)])
    a(f"s_mov_b32 s57, {LOG2E | 0x80000000}")
    G = [f"v{24+i}" for i in range(4)]
    for x in G: a(f"v_mul_f32 {x}, s57, {x}")
    for x in G: a(f"v_exp_f32 {x}, {x}")
    for x in G: a(f"v_add_f32 {x}, 1.0, {x}")
    for x in G: a(f"v_rcp_f32 {x}, {x}")
    bf16r_n(G)
    for i in range(4): a(f"v_mul_f32 v{24+i}, v{24+i}, v{40+i}")
    bf16r_n(G)
    a(f"""
    v_lshlrev_b32 v8, 7, v6
    v_lshl_add_u32 v8, v7, 4, v8
    ds_write_b128 v8, v[24:27] offset:{L_H}
    v_lshrrev_b32 v8, 1, v2
    v_lshlrev_b32 v8, 7, v8
    v_mul_u32_u24 v9, 28, v1
    v_add_u32 v8, v8, v9
    v_and_b32 v9, 1, v0
    v_lshlrev_b32 v9, 4, v9
    v_sub_u32 v9, 16, v9
    """)
    for j in range(7):
        a(f"ds_read_b32 v{28+j}, v8 offset:{L_H + 4*j}")
    a("s_waitcnt lgkmcnt(0)")
    for j in range(7):
        Wd = HW + 8 * (j & 1)
        a(f"v_lshrrev_b32 v{Wd+2}, v9, v{28+j}")
        a(f"v_lshrrev_b32 v{Wd+7}, v9, v{28+j}")
        for m, st in ((0, 2), (1, 6), (2, 0), (3, 4)):
            c = "0" if j == 0 else f"v[{HA+4*m}:{HA+4*m+3}]"
            a(f"v_mfma_f32_16x16x32_bf16 v[{HA+4*m}:{HA+4*m+3}], v[{Wd+st}:{Wd+st+3}], v[{128+4*j}:{131+4*j}], {c}")
    a(f"""
    v_lshrrev_b32 v6, 1, v2
    v_lshlrev_b32 v5, 9, v6
    v_lshl_add_u32 v5, v1, 7, v5
    v_and_b32 v6, 1, v2
    v_lshl_add_u32 v5, v6, 5, v5
    s_lshl_b32 s57, s59, 18
    s_lshl_b32 s58, s56, 12
    s_add_u32 s57, s57, s58
    s_add_u32 s60, s57, {WS_B}
    v_lshlrev_b32 v6, 4, v0
    """)
    for beta in range(2):
        for hh in range(2):
            d = 24 + 4 * (beta * 2 + hh)
            src = [HA + 8 * hh + 2 * beta, HA + 8 * hh + 2 * beta + 1, HA + 8 * hh + 4 + 2 * beta, HA + 8 * hh + 4 + 2 * beta + 1]
            for i in range(4):
                a(f"v_bfi_b32 v{d+i}, {vFF}, {sT[i]}, v{src[i]}")
            a(f"ds_write_b128 v5, v[{d}:{d+3}] offset:{L_BT + beta*64 + hh*16}")
    for j in range(4):
        a(f"ds_read_b128 v[{40+4*j}:{43+4*j}], v6 offset:{L_BT + j*1024}")
    for j in range(4):
        a(f"s_waitcnt lgkmcnt({3-j})")
        a(f"buffer_store_dwordx4 v[{40+4*j}:{43+4*j}], v6, {WS}, s60 offen offset:{j*1024} sc1")
    stamp(2)
    a(f"""
    L_kfac:
    v_lshrrev_b32 v6, 5, v0
    s_lshl_b32 s56, s3, 1
    v_add_u32 v6, s56, v6
    v_lshlrev_b32 v10, 6, v6
    """)
    lds_spin([f"ds_read_b128 v[{16+4*j}:{19+4*j}], v10 offset:{L_MX+16*j}" for j in range(4)], ["v18", "v22", "v26", "v30"], sleep=4)
    a(f"""
    v_max3_f32 v32, v16, v20, v24
    v_max_f32 v32, v32, v28
    s_mov_b32 s69, {LOG2E}
    """)
    for j in range(4): a(f"v_sub_f32 v{60+j}, v{16+4*j}, v32")
    for j in range(4): a(f"v_mul_f32 v{60+j}, s69, v{60+j}")
    for j in range(4): a(f"v_exp_f32 v{60+j}, v{60+j}")
    a(f"""
    v_mul_f32 v33, v60, v17
    v_fmac_f32 v33, v61, v21
    v_fmac_f32 v33, v62, v25
    v_fmac_f32 v33, v63, v29
    s_getreg_b32 s56, hwreg(HW_REG_XCC_ID)
    s_and_b32 s56, s56, 15
    s_lshl_b32 s56, s56, 8
    v_mov_b32 v34, s56
    v_mov_b32 v35, v33
    """)
    tag(32)
    a(f"""
    s_lshr_b32 s56, s2, 5
    s_lshl_b32 s56, s56, 11
    s_bfe_u32 s57, s2, {(3 << 16) | 2}
    s_lshl_b32 s57, s57, 6
    s_add_u32 s56, s56, s57
    s_lshl_b32 s57, s59, 4
    s_add_u32 s56, s56, s57
    s_add_u32 s56, s56, {WS_ML}
    v_lshlrev_b32 v8, 9, v6
    s_mov_b32 s70, 1
    s_mov_b32 s71, 1
    s_mov_b64 exec, s[70:71]
    buffer_store_dwordx4 v[32:35], v8, {WS}, s56 offen sc1
    s_mov_b64 exec, -1
    v_and_b32 v8, 1, v0
    v_lshlrev_b32 v64, 10, v8
    v_lshl_add_u32 v64, v6, 8, v64
    v_and_b32 v8, 1, v1
    v_lshl_add_u32 v64, v8, 7, v64
    v_lshrrev_b32 v9, 1, v2
    v_lshl_add_u32 v64, v9, 4, v64
    v_lshlrev_b32 v65, 14, v6
    v_lshl_add_u32 v65, v8, 13, v65
    v_lshl_add_u32 v65, v2, 4, v65
    s_lshr_b32 s57, s2, 5
    s_lshl_b32 s57, s57, 16
    s_bfe_u32 s58, s2, {(3 << 16) | 2}
    s_lshl_b32 s58, s58, 10
    s_add_u32 s57, s57, s58
    s_lshl_b32 s58, s59, 8
    s_add_u32 s57, s57, s58
    s_add_u32 s47, s57, {WS_O}
    """)
    a(f"""
    s_add_u32 s70, s47, {WS_OL - WS_O}
    s_cmp_lg_u32 s3, 0
    s_cbranch_scc1 L_kpub
    s_lshr_b32 s57, s2, 3
    s_lshl_b32 s57, s57, 9
    s_add_u32 s63, s57, {WS_ML}
    v_and_b32 v10, 31, v0
    v_lshlrev_b32 v11, 4, v10
    v_lshlrev_b32 v10, 2, v10
    s_getreg_b32 s62, hwreg(HW_REG_XCC_ID)
    s_and_b32 s62, s62, 15
    """)
    credit_wait(str(o["mlstart"]), sleep=4)
    poll([f"buffer_load_dwordx4 v[20:23], v11, {WS}, s63 offen sc1"], [20], sleep=4)
    a(f"""
    v_and_b32 v20, 0xffffff00, v20
    v_lshrrev_b32 v22, 8, v22
    v_max_f32_dpp v24, v20, v20 quad_perm:[1,0,3,2] {DPP}
    v_cmp_ne_u32 vcc, s62, v22
    v_max_f32_dpp v24, v24, v24 quad_perm:[2,3,0,1] {DPP}
    v_sub_f32 v24, v20, v24
    v_mul_f32 v24, s69, v24
    v_exp_f32 v24, v24
    s_cmp_eq_u64 vcc, 0
    s_cselect_b32 s62, {2 if o['local'] else 1}, 1
    v_mul_f32 v25, v24, v21
    """)
    dpp_reduce("v_add_f32", ["v25"], QUAD)
    a(f"""
    v_rcp_f32 v25, v25
    v_mov_b32 v26, s62
    v_mul_f32 v24, v24, v25
    ds_write_b32 v10, v24 offset:{L_WT}
    ds_write_b32 v15, v26 offset:{L_FH}
    """)
    stamp(2 if False else 1)
    a(f"""
    L_kpub:
    s_mov_b32 s96, {o['spin']}
    L_md:
    ds_read_b32 v8, v15 offset:{L_FH}
    s_waitcnt lgkmcnt(0)
    v_readfirstlane_b32 s62, v8
    s_cmp_lg_u32 s62, 0
    s_cbranch_scc1 L_mdd
    s_sleep 4
    s_sub_u32 s96, s96, 1
    s_cbranch_scc0 L_md
    L_mdd:
    """)
    credit_wait("36", sleep=4)
    credit_wait("38", sleep=o["ksl"])
    stamp(11)
    for w in range(4):
        a(f"ds_read_b128 v[{16+4*w}:{19+4*w}], v64 offset:{L_O + w*2048}")
    for w in range(4):
        a(f"s_waitcnt lgkmcnt({3-w})")
        for i in range(4):
            if w == 0: a(f"v_mul_f32 v{16+i}, v60, v{16+i}")
            else: a(f"v_fmac_f32 v{16+i}, v{60+w}, v{16+4*w+i}")
    tag(16)
    a(f"""
    s_cmp_eq_u32 s62, 2
    s_cbranch_scc0 L_kpg
    buffer_store_dwordx4 v[16:19], v65, {WS}, s70 offen
    """)
    stamp(9)
    a(f"""
    s_branch L_bar1
    L_kpg:
    buffer_store_dwordx4 v[16:19], v65, {WS}, s47 offen sc1
    s_branch L_bar1
    """)
    a(f"""
    L_k2b:
    s_lshr_b32 s70, s2, 6
    s_lshl_b32 s70, s70, 18
    s_and_b32 s71, s2, 63
    s_lshl_b32 s71, s71, 6
    s_add_u32 s70, s70, s71
    s_and_b32 s61, s2, 7
    s_lshl_b32 s61, s61, 10
    s_lshr_b32 s71, s2, 3
    s_lshl_b32 s71, s71, 5
    s_add_u32 s61, s61, s71
    s_add_u32 s98, s70, {WS_S}
    s_add_u32 s99, s98, 0x10000
    s_add_u32 s100, s98, 0x20000
    s_add_u32 s101, s98, 0x30000
    s_add_u32 s52, s70, {WS_B}
    s_add_u32 s53, s52, 0x10000
    s_add_u32 s54, s52, 0x20000
    s_add_u32 s55, s52, 0x30000
    v_lshlrev_b32 v91, 3, v90
    buffer_load_dwordx2 v[80:81], v91, s[12:15], s61 offen
    v_lshrrev_b32 v13, 2, v0
    v_lshlrev_b32 v13, 12, v13
    v_lshl_add_u32 v13, v90, 4, v13
    s_mov_b32 s4, s34
    s_and_b32 s5, s35, 0xffff
    s_mov_b32 s6, 8192
    s_mov_b32 s7, 0x20000
    """)
    def reduce16(base):
        sum4(base, 4)
        dpp_reduce("v_add_f32", [f"v{base+i}" for i in range(4)], [f"row_ror:{r}" for r in (8, 4)])
        swap_reduce("v_add_f32", [f"v{base+i}" for i in range(4)], [f"v{base+4+i}" for i in range(4)])
    def gate():
        reduce16(64)
        a(f"s_mov_b32 s57, {LOG2E | 0x80000000}")
        Bv = [f"v{64+i}" for i in range(4)]
        bf16r_n(Bv)
        for i in range(4): a(f"v_mul_f32 v{72+i}, s57, v{64+i}")
        for i in range(4): a(f"v_exp_f32 v{72+i}, v{72+i}")
        for i in range(4): a(f"v_add_f32 v{72+i}, 1.0, v{72+i}")
        for i in range(4): a(f"v_rcp_f32 v{72+i}, v{72+i}")
        for i in range(4): a(f"v_mul_f32 v{64+i}, v{64+i}, v{72+i}")
        bf16r_n(Bv)
        a(f"""
        v_lshlrev_b32 v68, 16, v80
        v_and_b32 v69, 0xffff0000, v80
        v_lshlrev_b32 v70, 16, v81
        v_and_b32 v71, 0xffff0000, v81
        """)
    BL = [f"buffer_load_dwordx4 v[{64+4*j}:{67+4*j}], v13, {WS}, s{52+j} offen sc1" for j in range(4)]
    credit_wait(str(o["hstart"]), sleep=4)
    if o["nob"]:
        a("v_mov_b32 v8, 0")
    else:
      for l in BL: a(l)
      for j in range(4):
        a(f"s_waitcnt vmcnt({3-j})")
        chk(64 + 4 * j, "v8", j == 0)
    a("""
    s_mov_b32 s62, 0
    v_cmp_ne_u32 vcc, 0, v8
    s_cbranch_vccnz L_k2c
    s_mov_b32 s62, 1
    """)
    gate()
    a("L_k2c:")
    stamp(2)
    if o["pre"]:
        a(f"""
        s_lshr_b32 s57, s2, 2
        s_lshl_b32 s57, s57, 13
        s_add_u32 s57, s57, {WS_OL}
        v_lshlrev_b32 v46, 7, v0
        buffer_load_dword v47, v46, {WS}, s57 offen sc1
        """)
    a("s_branch L_bar1")
    a(f"""
    L_k3b:
    s_lshr_b32 s56, s2, 2
    s_lshl_b32 s56, s56, 16
    s_lshl_b32 s57, s59, 8
    s_add_u32 s56, s56, s57
    s_add_u32 s8, s24, s56
    s_addc_u32 s9, s25, 0
    s_and_b32 s9, s9, 0xffff
    s_sub_u32 s10, {4096*1024}, s56
    s_mov_b32 s11, 0x20000
    v_lshlrev_b32 v5, 1, v1
    v_xor_b32 v5, v5, v2
    v_xor_b32 v6, 8, v5
    v_lshlrev_b32 v5, 4, v5
    v_lshlrev_b32 v6, 4, v6
    v_lshl_add_u32 v5, v1, 10, v5
    v_lshl_add_u32 v6, v1, 10, v6
    """)
    wot = o["wothr"] or (38 - (o['WV'] or W) + 1)
    evs = [(wot, 0), (min(wot + 1, 38), 2)]
    credit_wait(str(min(evs[0][0], 34) - 3), sleep=4)
    for thr_, grp0 in evs:
        credit_wait(str(thr_))
        for grp in (grp0, grp0 + 1):
            a(f"s_mov_b32 m0, {L_WO + grp*4096}")
            for q in range(4):
                a(f"s_mov_b32 s{60+q}, {grp*16384 + q*3072}")
            for q in range(4):
                a(f"buffer_load_dwordx4 {'v5' if q < 2 else 'v6'}, s[8:11], s{60+q} offen offset:{q*1024} nt lds")
    stamp(2)
    a("s_branch L_bar1")

    a(f"""
    L_vwave:
    s_add_u32 s67, s2, {o['rot']}
    s_and_b32 s67, s67, 255
    s_cmp_lt_u32 s67, 128
    s_movk_i32 s60, 3584
    s_cselect_b32 s60, 8192, s60
    s_cselect_b32 s61, 0, 128
    s_cselect_b32 s62, 0, 4096
    s_cmp_lt_u32 s67, 184
    s_cselect_b32 s61, s61, 184
    s_cselect_b32 s62, s62, 5888
    s_sub_u32 s61, s67, s61
    s_lshr_b32 s61, s61, 2
    s_lshl_b32 s63, s61, 7
    s_add_u32 s62, s62, s63
    s_lshl_b32 s63, s59, 7
    s_lshl_b32 s64, s58, 5
    s_add_u32 s63, s63, s64
    s_mul_i32 s64, s63, s60
    s_lshl_b32 s65, s61, 8
    s_add_u32 s64, s64, s65
    v_lshrrev_b32 v6, 1, v2
    v_and_b32 v7, 1, v0
    v_lshlrev_b32 v4, 10, v6
    v_lshl_add_u32 v5, v1, 4, v4
    s_lshl_b32 s65, s63, 1
    v_lshlrev_b32 v10, 3, v1
    v_mul_lo_u32 v10, v10, s60
    v_lshl_add_u32 v10, v2, 4, v10
    s_mov_b32 s14, 8192
    s_mov_b32 s15, 0x20000
    s_mov_b32 s6, 32768
    s_mov_b32 s7, 0x20000
    s_mov_b32 s71, s58
    s_lshl_b32 s10, s60, 9
    s_sub_u32 s10, s10, s64
    s_mov_b32 s11, 0x20000
    s_mov_b32 s66, 0
    s_cmp_lt_u32 s67, 184
    s_waitcnt lgkmcnt(0)
    s_cselect_b32 s8, s28, s30
    s_cselect_b32 s9, s29, s31
    s_cmp_lt_u32 s67, 128
    s_cselect_b32 s8, s22, s8
    s_cselect_b32 s9, s23, s9
    s_add_u32 s8, s8, s64
    s_addc_u32 s9, s9, 0
    s_and_b32 s9, s9, 0xffff
    s_mov_b32 s12, s16
    s_and_b32 s13, s17, 0xffff
    s_load_dword s40, s[38:39], 0
    s_add_u32 s4, s20, s56
    s_addc_u32 s5, s21, 0
    s_and_b32 s5, s5, 0xffff
    s_cmp_ge_u32 s67, 240
    s_cbranch_scc1 L_vnos1
    buffer_load_dwordx4 v[48:51], v5, s[12:15], s65 offen
    """)
    if o["seqw"]:
        a("""
        s_sub_u32 s8, s56, 0x180000
        s_add_u32 s8, s18, s8
        s_addc_u32 s9, s19, 0
        s_and_b32 s9, s9, 0xffff
        s_mov_b32 s10, 32768
        s_mov_b32 s60, 1024
        v_lshlrev_b32 v10, 4, v0
        """)
    for j in range(8):
        a(f"buffer_load_dwordx4 v[{52+4*j}:{55+4*j}], v10, s[8:11], s66 offen nt")
        if j < 7: a("s_add_u32 s66, s66, s60")
    a("s_barrier")
    post()
    stamp(7)
    W0 = 128
    for r in range(W0, W0 + 66):
        if (r - W0) % 8 not in (2, 7): a(f"v_mov_b32 v{r}, 0")
    a(f"""
    v_lshlrev_b32 v10, 4, v6
    s_waitcnt lgkmcnt(0)
    """)
    tags_setup()
    a(f"""
    s_lshl_b32 s66, s58, 12
    v_lshlrev_b32 v9, 4, v0
    v_add_u32 v11, s66, v9
    v_lshrrev_b32 v44, 5, v0
    v_and_b32 v45, 31, v0
    v_lshlrev_b32 v12, 11, v7
    v_lshrrev_b32 v46, 1, v45
    v_lshl_add_u32 v12, v46, 4, v12
    v_lshl_add_u32 v12, v44, 3, v12
    s_lshl_b32 s66, s58, 8
    v_add_u32 v12, s66, v12
    s_lshl_b32 s66, s59, 3
    s_lshl_b32 s67, s58, 1
    s_add_u32 s66, s66, s67
    s_mul_i32 s66, s66, 7680
    s_add_u32 s66, s66, s62
    s_lshl_b32 s66, s66, 2
    s_add_u32 s69, s66, {WS_P1}
    v_mul_u32_u24 v47, {7680*4}, v44
    v_lshl_add_u32 v47, v45, 4, v47
    s_lshl_b32 s70, s58, 2
    s_add_u32 s70, s70, {L_F1}
    v_and_b32 v44, 3, v0
    v_lshlrev_b32 v44, 2, v44
    s_waitcnt vmcnt(0)
    s_cmp_lt_u32 s58, 2
    s_cbranch_scc1 L_vnp
    """)
    post()
    a("L_vnp:")
    stamp(1)
    lds_spin([f"ds_read_b128 v[16:19], v10 offset:{L_ST}"], ["v18"])
    a("""
    v_cmp_eq_u32 vcc, 0, v7
    v_cndmask_b32 v22, 0, v17, vcc
    v_sub_f32 v23, v17, v22
    """)
    AC = 196
    for p in range(4):
        x = 48 + p
        a(f"""
        v_lshlrev_b32 v24, 16, v{x}
        v_and_b32 v25, 0xffff0000, v{x}
        v_sub_f32 v24, v24, v16
        v_sub_f32 v25, v25, v16
        v_cvt_pk_bf16_f32 v26, v24, v25
        v_lshlrev_b32 v24, 16, v26
        v_and_b32 v25, 0xffff0000, v26
        v_mul_f32 v26, v24, v22
        v_mul_f32 v27, v24, v23
        v_mul_f32 v28, v25, v22
        v_mul_f32 v29, v25, v23
        v_cvt_pk_bf16_f32 v{W0+16*p+2}, v26, v27
        v_cvt_pk_bf16_f32 v{W0+16*p+7}, v26, v27
        v_cvt_pk_bf16_f32 v{W0+16*p+10}, v28, v29
        v_cvt_pk_bf16_f32 v{W0+16*p+15}, v28, v29
        """)
        for j in (2 * p, 2 * p + 1):
            Wd = W0 + 8 * j
            for m, st in ((0, 2), (1, 6), (2, 0), (3, 4)):
                c = "0" if j == 0 else f"v[{AC+4*m}:{AC+4*m+3}]"
                a(f"v_mfma_f32_16x16x32_bf16 v[{AC+4*m}:{AC+4*m+3}], v[{Wd+st}:{Wd+st+3}], v[{52+4*j}:{55+4*j}], {c}")
    for m in range(4):
        a(f"ds_write_b128 v11, v[{AC+4*m}:{AC+4*m+3}] offset:{L_S1 + m*1024}")
    flag_write("s70")
    spin_flag("v44", L_F1)
    for w in range(4):
        a(f"ds_read_b64 v[{16+4*w}:{17+4*w}], v12 offset:{L_S1 + w*4096}")
        a(f"ds_read_b64 v[{18+4*w}:{19+4*w}], v12 offset:{L_S1 + w*4096 + 1024}")
    a("s_waitcnt lgkmcnt(0)")
    sum4(16, 4)
    tag(16)
    a(f"buffer_store_dwordx4 v[16:19], v47, {WS}, s69 offen sc1")
    stamp(2)
    a(f"""
    s_branch L_vload
    L_vnos1:
    s_barrier
    s_waitcnt lgkmcnt(0)
    s_mov_b64 exec, 1
    ds_add_u32 v15, v14 offset:{L_CR}
    s_mov_b64 exec, -1
    s_cmp_lt_u32 s58, 2
    s_cbranch_scc1 L_vnp2
    """)
    post()
    a("L_vnp2:")
    tags_setup()
    a(f"""
    L_vload:
    v_lshlrev_b32 v4, 4, v0
    """)
    tail_pre()
    for t in range(8):
        a(f"s_mov_b32 s{60+t}, {t*4096}")
    a(f"""
    v_and_b32 v7, 3, v0
    v_lshrrev_b32 v6, 2, v2
    v_mov_b32 v10, 0x0c0c0c0c
    """)
    for tb in range(2):
        lo = 0x0c0c0000 | ((2 * tb + 1) << 8) | (2 * tb)
        hi = ((2 * tb + 1) << 24) | ((2 * tb) << 16) | 0x0c0c
        a(f"""
        v_mov_b32 v11, {lo}
        v_mov_b32 v12, {hi}
        v_cmp_eq_u32 vcc, 0, v7
        v_cndmask_b32 v{32+2*tb}, v10, v11, vcc
        v_cmp_eq_u32 vcc, 1, v7
        v_cndmask_b32 v{32+2*tb}, v{32+2*tb}, v12, vcc
        v_cmp_eq_u32 vcc, 2, v7
        v_cndmask_b32 v{33+2*tb}, v10, v11, vcc
        v_cmp_eq_u32 vcc, 3, v7
        v_cndmask_b32 v{33+2*tb}, v{33+2*tb}, v12, vcc
        """)
    NW = 8
    XW = 40
    for r in range(XW, XW + 4 * NW + 2):
        if (r - XW) % 4 in (0, 1): a(f"v_mov_b32 v{r}, 0")
    a(f"""
    v_lshl_add_u32 v10, v6, 2, v1
    v_mul_u32_u24 v10, 80, v10
    s_mul_i32 s56, s71, {PW}
    v_add_u32 v10, s56, v10
    s_lshl_b32 s56, s71, 2
    v_mov_b32 v11, s56
    s_lshl_b32 s56, s71, 11
    v_lshlrev_b32 v12, 4, v0
    v_add_u32 v12, s56, v12
    s_sub_i32 s68, s68, {(o['WV'] or W) - W}
    s_sub_i32 s70, s68, 4
    """)
    credit_wait("s70", sleep=4)
    posted = stream_issue("s[4:7]", "v4", o['WV'] or W)
    stamp(3)
    a("v_mov_b32 v13, 1")
    if o["pdec"]:
        a(f"""
        ds_read_b32 v8, v11 offset:{L_FP}
        s_waitcnt lgkmcnt(0)
        v_cmp_ne_u32 vcc, 1, v8
        s_cbranch_vccz L_pok
        """)
        for k in range(posted, 3):
            a(f"s_waitcnt vmcnt({24-8*k})")
            post()
        a("v_mov_b32 v13, 0")
    spin_flag("v11", L_FP)
    a("L_pok:")
    for jj in range(4):
        a(f"ds_read_b128 v[{16+4*jj}:{19+4*jj}], v10 offset:{L_P + jj*16}")
    a("s_waitcnt lgkmcnt(0)")
    stamp(4)
    OA = 76
    def mkx(j):
        T, jj = j >> 2, j & 3
        Wd = XW + 4 * (j % NW)
        r = 16 + 4 * jj + (T >> 1)
        a(f"v_perm_b32 v{Wd+2}, v{r}, v{r}, v{32+2*(T&1)}")
        a(f"v_perm_b32 v{Wd+3}, v{r}, v{r}, v{33+2*(T&1)}")
    for j in range(4): mkx(j)
    for j in range(32):
        Wd = XW + 4 * (j % NW)
        reg = 128 + j * 4
        a(f"s_waitcnt vmcnt({31-j})")
        if j % 8 == 7 and j // 8 >= posted and j < 31: post("v13")
        c0 = "0" if j == 0 else f"v[{OA}:{OA+3}]"
        c1 = "0" if j == 0 else f"v[{OA+4}:{OA+7}]"
        a(f"v_mfma_f32_16x16x32_bf16 v[{OA}:{OA+3}], v[{Wd+2}:{Wd+5}], v[{reg}:{reg+3}], {c0}")
        a(f"v_mfma_f32_16x16x32_bf16 v[{OA+4}:{OA+7}], v[{Wd}:{Wd+3}], v[{reg}:{reg+3}], {c1}")
        if j + 4 < 32: mkx(j + 4)
    a(f"""
    ds_write_b128 v12, v[{OA}:{OA+3}] offset:{L_O}
    ds_write_b128 v12, v[{OA+4}:{OA+7}] offset:{L_O+1024}
    """)
    post()
    stamp(5)
    a(f"""
    L_bar1:
    s_mov_b32 s64, 0x11111111
    s_mov_b32 s65, 0x11111111
    s_mov_b32 s66, 0x00ff00ff
    s_mov_b32 s67, 0x00ff00ff
    s_waitcnt lgkmcnt(0)
    s_barrier
    ds_read_b32 v25, v15 offset:{L_FH}
    ds_read_b32 v24, v85 offset:{L_WT}
    s_add_u32 s58, s46, {WS_OL - WS_O}
    s_mov_b32 s96, {o['poll']}
    s_waitcnt lgkmcnt(1)
    v_readfirstlane_b32 s57, v25
    s_cmp_eq_u32 s57, 2
    s_cselect_b32 s57, s58, s46
    s_cselect_b32 s0, s0, 1
    """)
    stamp(6)
    a(f"""
    L_op:
    buffer_load_dwordx4 v[16:19], v84, {WS}, s57 offen sc1
    s_waitcnt vmcnt(0)
    """)
    chk(16, "v8", True)
    a(f"""
    v_cmp_ne_u32 vcc, 0, v8
    s_cbranch_vccz L_opd
    s_sub_u32 s96, s96, 1
    s_cbranch_scc0 L_op
    L_opd:
    s_waitcnt lgkmcnt(0)
    """)
    stamp(7)
    for i in range(4):
        a(f"v_mul_f32 v{16+i}, v24, v{16+i}")
    dpp_reduce("v_add_f32", ["v16", "v17", "v18", "v19"], QUAD)
    a(f"""
    v_cvt_pk_bf16_f32 v20, v16, v17
    v_cvt_pk_bf16_f32 v21, v18, v19
    s_mov_b64 exec, s[64:65]
    ds_write_b64 v86, v[20:21] offset:{L_OI}
    s_mov_b64 exec, -1
    s_waitcnt vmcnt(0) lgkmcnt(0)
    s_barrier
    ds_read_b128 v[16:19], v87 offset:{L_OI}
    ds_read_b64_tr_b16 v[24:25], v88 offset:{L_WO}
    ds_read_b64_tr_b16 v[26:27], v88 offset:{L_WO+1024}
    ds_read_b128 v[20:23], v87 offset:{L_OI+64}
    ds_read_b64_tr_b16 v[28:29], v88 offset:{L_WO+8192}
    ds_read_b64_tr_b16 v[30:31], v88 offset:{L_WO+9216}
    s_waitcnt lgkmcnt(3)
    v_mfma_f32_16x16x32_bf16 v[32:35], v[24:27], v[16:19], 0
    s_waitcnt lgkmcnt(0)
    v_mfma_f32_16x16x32_bf16 v[32:35], v[28:31], v[20:23], v[32:35]
    """)
    tag(32)
    a(f"""
    s_mov_b64 exec, s[66:67]
    s_cmp_eq_u32 s0, 0
    s_cbranch_scc1 L_sl
    buffer_store_dwordx4 v[32:35], v89, {WS}, s1 offen sc1
    s_branch L_sd
    L_sl:
    buffer_store_dwordx4 v[32:35], v89, {WS}, s1 offen
    L_sd:
    s_mov_b64 exec, -1
    """)
    stamp(8)
    a(f"""
    s_cmp_lg_u32 s3, 2
    s_cbranch_scc1 L_fin
    """)
    a("""
    s_cmp_eq_u32 s62, 1
    s_cbranch_scc1 L_gok
    """)
    poll(BL, [64 + 4 * j for j in range(4)])
    gate()
    a("L_gok:")
    if o["d2"]: a(f"s_sleep {o['d2']}")
    poll([f"buffer_load_dwordx4 v[{16+4*j}:{19+4*j}], v13, {WS}, s{98+j} offen sc1" for j in range(4)],
         [16 + 4 * j for j in range(4)])
    stamp(9)
    reduce16(16)
    Sv = [f"v{16+i}" for i in range(4)]
    bf16r_n(Sv)
    for i in range(4): a(f"v_mul_f32 v{16+i}, v{16+i}, v{64+i}")
    bf16r_n(Sv)
    for i in range(4): a(f"v_add_f32 v{16+i}, v{16+i}, v{68+i}")
    a(f"""
    v_cvt_pk_bf16_f32 v20, v16, v17
    v_cvt_pk_bf16_f32 v21, v18, v19
    s_mov_b64 exec, 0xf
    buffer_store_dwordx2 v[20:21], v91, s[4:7], s61 offen
    s_cmp_lg_u32 s2, 0
    s_cbranch_scc1 L_fin
    v_mov_b32 v8, {sE1}
    s_mov_b64 exec, 1
    buffer_store_dword v8, v15, {WS}, 0 offen sc1
    L_fin:
    """)
    if diag:
        stamp(10)
        a(f"""
        s_waitcnt lgkmcnt(0)
        s_mov_b64 exec, 1
        s_lshl_b32 s56, s2, 10
        s_lshl_b32 s57, s3, 7
        s_add_u32 s56, s56, s57
        s_add_u32 s38, s38, 0x10000000
        s_addc_u32 s39, s39, 0
        v_mov_b32 v4, s56
        """)
        a("s_getreg_b32 s57, hwreg(HW_REG_XCC_ID)")
        a("s_getreg_b32 s58, hwreg(HW_REG_HW_ID)")
        a("v_mov_b32 v50, s57")
        a("v_mov_b32 v51, s58")
        a("global_store_dwordx2 v4, v[50:51], s[38:39] offset:120")
        for i in range(12):
            a(f"v_mov_b32 v{16+2*i}, s{72+2*i}")
            a(f"v_mov_b32 v{17+2*i}, s{73+2*i}")
            a(f"global_store_dwordx2 v4, v[{16+2*i}:{17+2*i}], s[38:39] offset:{8*i}")
    a("""
    L_end:
    s_endpgm
    """)
    a.lines = [(f"s_memrealtime s[{72+2*int(l[5:])}:{73+2*int(l[5:])}]" if diag == 1 else "s_nop 0") if l.startswith("STAMP") else l for l in a.lines]
    return wrap(a.text(), 256, 512, L_END, 256)

if __name__ == "__main__":
    open("k4.s", "w").write(gen(d2=14))
    V = {"k4_diag": dict(), "k4_nosloc": dict(sloc=0), "k4_d2_8": dict(d2=8), "k4_d2_20": dict(d2=20), "k4_ml34": dict(mlstart=34), "k4_wo33": dict(wothr=33), "k4_cyc": dict(diag=2)}
    for k, v in V.items():
        d = dict(diag=1, d2=14); d.update(v)
        open(k + ".s", "w").write(gen(**d))
    print(" ".join(k + ".s" for k in V)); print(", ".join('"dev/%s.s"' % k for k in V))
```

```python
import sys
from asmlib import *

WS_XS = 0x1000
WS_P1 = 0x10000
P1_KQ = 120 * 2048
WS_O  = 0x90000
WS_ML = 0x110000
WS_S  = 0x120000
WS_B  = 0x1A0000
WS_SIZE = 0x220000
L_XN   = 0
XNS    = 528
L_Q    = L_XN + 8 * XNS
QSTR   = 272
L_P    = L_Q + 1280
PW     = 1280
L_O    = L_P + 4 * PW
L_OI   = L_O + 8192
OISTR  = 272
L_H    = L_OI + 8 * OISTR
HSTR   = 144
L_FL   = L_H + 8 * HSTR
L_MX   = L_FL
L_ST   = L_MX + 256
L_F1   = L_ST + 128
L_FQ   = L_F1 + 16
L_FP   = L_FQ + 16
L_CR   = L_FP + 16
L_MD   = L_CR + 16
L_TC   = L_MD + 16
L_WT   = L_FL + 512
L_WD   = 24576
L_WO   = 32768
L_W1   = 49152
L_END  = L_W1 + 32768
assert L_WT + 128 <= L_WD
assert L_O % 16 == 0 and L_OI % 16 == 0 and L_H % 16 == 0 and L_FL % 16 == 0 and L_Q % 16 == 0

DPP = "row_mask:0xf bank_mask:0xf"
LOG2E = 0x3fb8aa3b
SCALE = 0x3db504f3
sH, sT = "s40", ["s41", "s42", "s43", "s44"]
sE1 = "s45"
WS = "s[48:51]"
vFF = "v3"
QUAD = ["quad_perm:[1,0,3,2]", "quad_perm:[2,3,0,1]"]
CEND = 38

def gen(diag=0, **opts):
    o = dict(spin=400000, poll=40000, W=4, d2=14, bstart=0, wothr=36, mlstart=30, local=1, k0e=1, rot=32, csl=1, qsl=2, noq=0, nogu=0, nobg=0, nop1=0, nobs=0, nowd=0, now1=0, hthr=36, gthr=35)
    o.update(opts)
    W = o["W"]
    a = Asm()
    def stamp(i):
        if diag == 1: a(f"s_memrealtime s[{72+2*i}:{73+2*i}]")
        if diag == 2: a(f"s_memtime s[{72+2*i}:{73+2*i}]")
    def bf16r(dst, src):
        a(f"v_cvt_pk_bf16_f32 {dst}, {src}, {src}")
        a(f"v_lshlrev_b32 {dst}, 16, {dst}")
    def bf16r_n(regs):
        for r in regs: a(f"v_cvt_pk_bf16_f32 {r}, {r}, {r}")
        for r in regs: a(f"v_lshlrev_b32 {r}, 16, {r}")
    def tag(base):
        for i in range(4):
            a(f"v_bfi_b32 v{base+i}, {vFF}, {sT[i]}, v{base+i}")
    def chk(base, acc, first):
        for i in range(4):
            a(f"v_msad_u8 {acc}, v{base+i}, {sT[i]}, {'0' if (first and i == 0) else acc}")
    def swap_reduce(op, xs, ts):
        for sw in ("v_permlane16_swap_b32", "v_permlane32_swap_b32"):
            for x, t in zip(xs, ts): a(f"v_mov_b32 {t}, {x}")
            for x, t in zip(xs, ts): a(f"{sw} {x}, {t}")
            for x, t in zip(xs, ts): a(f"{op} {x}, {x}, {t}")
    def dpp_reduce(op, xs, ctrls):
        for c in ctrls:
            for x in xs:
                a(f"{op}_dpp {x}, {x}, {x} {c} {DPP}")
    def lds_spin(reads, flags, sleep=1):
        L = a.label("spin"); D = a.label("spind")
        a(f"s_mov_b32 s96, {o['spin']}")
        a(f"{L}:")
        for r in reads: a(r)
        a("s_waitcnt lgkmcnt(0)")
        if len(flags) == 1:
            f = flags[0]
        else:
            a(f"v_and_b32 v8, {flags[0]}, {flags[1]}")
            a(f"v_and_b32 v9, {flags[2]}, {flags[3]}")
            a(f"v_and_b32 v8, v8, v9")
            f = "v8"
        a(f"""
        v_cmp_ne_u32 vcc, 1, {f}
        s_cbranch_vccz {D}
        s_sleep {sleep}
        s_sub_u32 s96, s96, 1
        s_cbranch_scc0 {L}
        {D}:
        """)
    def spin_flag(addr, off, sleep=1):
        lds_spin([f"ds_read_b32 v8, {addr} offset:{off}"], ["v8"], sleep)
    def credit_wait(need, sleep=1):
        L = a.label("cr"); D = a.label("crd")
        a(f"""
        s_mov_b32 s96, {o['spin']}
        {L}:
        ds_read_b32 v8, v15 offset:{L_CR}
        s_waitcnt lgkmcnt(0)
        v_readfirstlane_b32 s97, v8
        s_cmp_ge_i32 s97, {need}
        s_cbranch_scc1 {D}
        {'s_sleep %d' % sleep if sleep else ''}
        s_sub_u32 s96, s96, 1
        s_cbranch_scc0 {L}
        {D}:
        """)
    def post(inc="v14"):
        a(f"""
        s_mov_b64 exec, 1
        ds_add_u32 v15, {inc} offset:{L_CR}
        s_mov_b64 exec, -1
        """)
    def flag_write(off):
        a(f"""
        v_mov_b32 v9, {off}
        s_mov_b64 exec, 1
        ds_write_b32 v9, v14
        s_mov_b64 exec, -1
        """)
    def tags_setup():
        a(f"""
        s_add_u32 {sE1}, s40, 1
        s_mul_i32 {sH}, {sE1}, 0x9E3779B1
        """)
        for i in range(4):
            a(f"""
            s_bfe_u32 {sT[i]}, {sH}, {(7 << 16) | (7 * i)}
            s_lshl_b32 {sT[i]}, {sT[i]}, 1
            s_or_b32 {sT[i]}, {sT[i]}, 1
            """)
        a(f"""
        s_mov_b32 s48, s38
        s_and_b32 s49, s39, 0xffff
        s_mov_b32 s50, {WS_SIZE}
        s_mov_b32 s51, 0x20000
        """)
    def poll(loads, nreg_bases, acc="v8", sleep=0):
        L = a.label("poll"); D = a.label("polld")
        a(f"s_mov_b32 s96, {o['poll']}")
        a(f"{L}:")
        for l in loads: a(l)
        n = len(loads)
        for i, b in enumerate(nreg_bases):
            a(f"s_waitcnt vmcnt({n-1-i})")
            chk(b, acc, i == 0)
        a(f"""
        v_cmp_ne_u32 vcc, 0, {acc}
        s_cbranch_vccz {D}
        {'s_sleep %d' % sleep if sleep else ''}
        s_sub_u32 s96, s96, 1
        s_cbranch_scc0 {L}
        {D}:
        """)
    def batch(k):
        for i in range(8):
            j = k * 8 + i
            r = 128 + 4 * j
            a(f"buffer_load_dwordx4 v[{r}:{r+3}], v4, s[4:7], s{60+(j>>2)} offen offset:{(j&3)*1024} nt")
    def stream_issue(lab=None):
        assert W >= 4
        for k in range(4):
            if lab and k == o["k0e"]: a(f"{lab}:")
            credit_wait("s68", sleep=o["csl"])
            a("s_add_i32 s68, s68, 1")
            batch(k)
    def sum4(b0, stride):
        for i in range(4):
            a(f"v_add_f32 v{b0+i}, v{b0+i}, v{b0+stride+i}")
            a(f"v_add_f32 v{b0+2*stride+i}, v{b0+2*stride+i}, v{b0+3*stride+i}")
        for i in range(4):
            a(f"v_add_f32 v{b0+i}, v{b0+i}, v{b0+2*stride+i}")
    def late_setup():
        a(f"""
        v_mov_b32 {vFF}, 0xff
        v_mov_b32 v13, 0
        v_mov_b32 v91, 0
        s_lshl_b32 s68, s3, 2
        s_add_i32 s68, s68, {6 - W + 1}
        """)
    def tr_base(dst, tmp1, tmp2):
        a(f"""
        v_lshrrev_b32 {tmp1}, 2, v2
        v_lshl_add_u32 {dst}, v1, 3, {tmp1}
        v_lshlrev_b32 {dst}, 7, {dst}
        v_lshrrev_b32 {tmp1}, 1, {tmp1}
        v_and_b32 {tmp2}, 1, v1
        v_lshl_or_b32 {tmp1}, {tmp2}, 1, {tmp1}
        v_lshl_add_u32 {dst}, {tmp1}, 5, {dst}
        v_lshl_add_u32 {dst}, v90, 3, {dst}
        """)
    def dma_off(d0, d1, stride, tmp):
        a(f"""
        v_lshrrev_b32 {tmp}, 3, v0
        v_and_b32 {d0}, 7, v0
        v_and_b32 {d1}, 2, {tmp}
        v_xor_b32 {d0}, {d0}, {d1}
        v_xor_b32 {d1}, 4, {d0}
        v_mul_lo_u32 {tmp}, {tmp}, {stride}
        v_lshl_add_u32 {d0}, {d0}, 4, {tmp}
        v_lshl_add_u32 {d1}, {d1}, 4, {tmp}
        """)
    def tail_pre():
        a(f"""
        s_lshr_b32 s56, s2, 3
        s_lshl_b32 s57, s56, 14
        s_lshl_b32 s58, s3, 11
        s_add_u32 s46, s57, s58
        s_add_u32 s46, s46, {WS_O}
        v_and_b32 v90, 3, v0
        v_lshrrev_b32 v8, 2, v0
        v_lshlrev_b32 v84, 4, v0
        s_lshl_b32 s58, s3, 4
        v_lshl_add_u32 v85, v90, 2, s58
        s_mul_i32 s57, s3, {OISTR}
        v_lshl_add_u32 v86, v8, 3, s57
        v_and_b32 v87, 7, v2
        v_mul_u32_u24 v87, {OISTR}, v87
        v_lshl_add_u32 v87, v1, 4, v87
        s_and_b32 s57, s2, 7
        s_lshl_b32 s57, s57, 16
        s_lshl_b32 s58, s56, 11
        s_add_u32 s57, s57, s58
        s_and_b32 s58, s3, 3
        s_lshl_b32 s58, s58, 9
        s_add_u32 s57, s57, s58
        s_add_u32 s1, s57, {WS_S}
        v_lshlrev_b32 v89, 6, v2
        v_lshl_add_u32 v89, v1, 4, v89
        """)
        tr_base("v88", "v8", "v9")
    def tail_fetch(sleep=2):
        spin_flag("v15", L_MD + 4, sleep)
        a(f"""
        ds_read_b32 v100, v85 offset:{L_WT}
        s_mov_b32 s64, 0x11111111
        s_mov_b32 s65, 0x11111111
        s_mov_b32 s66, 0x00ff00ff
        s_mov_b32 s67, 0x00ff00ff
        """)

    a(f"""
    s_cmp_ge_u32 s2, 256
    s_cbranch_scc1 L_end
    s_load_dwordx16 s[16:31], s[0:1], 0
    s_load_dwordx8 s[32:39], s[0:1], 64
    v_lshrrev_b32 v4, 6, v0
    s_and_b32 s3, s2, 7
    s_lshr_b32 s2, s2, 3
    s_lshl_b32 s3, s3, 5
    s_or_b32 s2, s2, s3
    v_readfirstlane_b32 s3, v4
    v_and_b32 v0, 63, v0
    v_lshrrev_b32 v1, 4, v0
    v_and_b32 v2, 15, v0
    v_mov_b32 v14, 0
    v_mov_b32 v15, 0
    v_lshlrev_b32 v5, 3, v0
    ds_write_b64 v5, v[14:15] offset:{L_FL}
    """)
    stamp(0)
    a(f"""
    s_bfe_u32 s56, s2, {(3 << 16) | 2}
    s_lshl_b32 s56, s56, 24
    s_lshr_b32 s57, s2, 5
    s_lshl_b32 s57, s57, 21
    s_add_u32 s56, s56, s57
    s_and_b32 s59, s2, 3
    s_lshl_b32 s57, s59, 17
    s_add_u32 s56, s56, s57
    s_add_u32 s56, s56, 0x180000
    s_and_b32 s58, s3, 3
    s_lshl_b32 s57, s58, 15
    s_add_u32 s56, s56, s57
    s_mov_b32 s6, 32768
    s_mov_b32 s7, 0x20000
    s_mov_b32 s14, 8192
    s_mov_b32 s15, 0x20000
    v_mov_b32 v14, 1
    s_cmp_lt_u32 s3, 4
    s_cbranch_scc1 L_kwave
    """)
    a(f"""
    s_add_u32 s67, s2, {o['rot']}
    s_and_b32 s67, s67, 255
    s_cmp_lt_u32 s67, 128
    s_movk_i32 s60, 3584
    s_cselect_b32 s60, 8192, s60
    s_cselect_b32 s61, 0, 128
    s_cmp_lt_u32 s67, 184
    s_cselect_b32 s61, s61, 184
    s_sub_u32 s61, s67, s61
    s_lshr_b32 s61, s61, 1
    s_and_b32 s62, s67, 1
    s_lshl_b32 s63, s62, 8
    s_lshl_b32 s64, s58, 6
    s_add_u32 s63, s63, s64
    s_mul_i32 s64, s63, s60
    s_lshl_b32 s65, s61, 7
    s_add_u32 s64, s64, s65
    """)
    dma_off("v10", "v11", "s60", "v6")
    a(f"""
    v_lshrrev_b32 v6, 3, v0
    v_and_b32 v7, 7, v0
    v_lshlrev_b32 v5, 10, v6
    v_lshl_add_u32 v5, v7, 4, v5
    s_lshl_b32 s65, s63, 1
    s_lshl_b32 s10, s60, 9
    s_sub_u32 s10, s10, s64
    s_mov_b32 s11, 0x20000
    s_lshl_b32 s69, s60, 3
    s_sub_u32 s70, s69, 1024
    s_lshl_b32 s66, s58, 13
    s_add_u32 s66, s66, {L_W1}
    s_mov_b32 m0, s66
    s_mov_b32 s66, 0
    s_cmp_lt_u32 s67, 184
    s_waitcnt lgkmcnt(0)
    s_cselect_b32 s8, s28, s30
    s_cselect_b32 s9, s29, s31
    s_cmp_lt_u32 s67, 128
    s_cselect_b32 s8, s22, s8
    s_cselect_b32 s9, s23, s9
    s_add_u32 s8, s8, s64
    s_addc_u32 s9, s9, 0
    s_and_b32 s9, s9, 0xffff
    s_mov_b32 s12, s16
    s_and_b32 s13, s17, 0xffff
    s_cmp_ge_u32 s67, 240
    s_cbranch_scc1 L_vstart2
    """)
    for j in range(8):
        if j == 4:
            a("s_add_u32 m0, m0, 4096")
            a("s_lshl_b32 s66, s69, 2")
        a(f"buffer_load_dwordx4 {'v10' if j % 2 == 0 else 'v11'}, s[8:11], s66 offen offset:{(j&3)*1024} nt lds")
        if j not in (3, 7): a("s_add_u32 s66, s66, s70")
    a(f"""
    buffer_load_dwordx4 v[48:51], v5, s[12:15], s65 offen
    L_vstart2:
    s_load_dword s40, s[38:39], 0
    s_branch L_vwave
    """)
    a(f"""
    L_kwave:
    s_mov_b32 s60, 0
    s_mov_b32 s61, 4096
    v_lshrrev_b32 v4, 2, v2
    v_lshlrev_b32 v4, 8, v4
    v_and_b32 v7, 3, v0
    v_lshl_add_u32 v4, v7, 4, v4
    v_lshl_add_u32 v4, v1, 6, v4
    v_lshrrev_b32 v6, 3, v0
    v_and_b32 v5, 7, v0
    v_lshlrev_b32 v5, 4, v5
    v_lshl_add_u32 v5, v6, 10, v5
    s_waitcnt lgkmcnt(0)
    s_add_u32 s4, s18, s56
    s_addc_u32 s5, s19, 0
    s_and_b32 s5, s5, 0xffff
    s_mov_b32 s12, s16
    s_and_b32 s13, s17, 0xffff
    s_cmp_eq_u32 s3, 3
    s_cbranch_scc1 L_k3a
    s_cmp_lg_u32 s3, 0
    s_cbranch_scc1 L_k12
    """)
    assert o["k0e"] in (0, 1)
    for k in range(o["k0e"]): batch(k)
    a("s_branch L_k12")
    a("L_k3a:")
    for t in range(8):
        a(f"buffer_load_dwordx4 v[{16+4*t}:{19+4*t}], v5, s[12:15], 0 offen offset:{t*128}")
    a("""
    L_k12:
    s_load_dword s40, s[38:39], 0
    """)
    for t in range(2, 8):
        a(f"s_mov_b32 s{60+t}, {t*4096}")
    late_setup()
    a("s_barrier")
    a("s_waitcnt lgkmcnt(0)")
    tags_setup()
    a(f"""
    s_getreg_b32 s47, hwreg(HW_REG_XCC_ID)
    s_and_b32 s47, s47, 15
    s_and_b32 s57, {sH}, 0xfffffff0
    s_or_b32 s47, s47, s57
    s_cmp_lg_u32 s3, 2
    s_cbranch_scc1 L_knx
    s_lshl_b32 s57, s2, 2
    s_add_u32 s57, s57, {WS_XS}
    v_mov_b32 v8, s47
    s_mov_b64 exec, 1
    buffer_store_dword v8, v15, {WS}, s57 offen sc1
    s_mov_b64 exec, -1
    L_knx:
    s_cmp_eq_u32 s3, 3
    s_cbranch_scc1 L_k3s
    s_cmp_lg_u32 s3, 0
    s_cbranch_scc1 L_kissue
    s_add_i32 s68, s68, {o["k0e"]}
    s_branch L_kissue0
    L_k3s:
    v_mov_b32 v10, 0
    v_mov_b32 v11, 0
    v_mov_b32 v12, 0
    v_mov_b32 v48, 0
    s_mov_b32 s69, 0x3f803f80
    v_lshlrev_b32 v6, 4, v6
    s_mov_b32 s70, 0x01010101
    s_mov_b32 s71, 0x01010101
    """)
    for t in range(8):
        a(f"s_waitcnt vmcnt({7-t})")
        for i in range(4):
            r = 16 + 4 * t + i
            a(f"v_dot2c_f32_bf16 {('v10','v11')[i&1]}, s69, v{r}")
            a(f"v_dot2c_f32_bf16 {('v12','v48')[i&1]}, v{r}, v{r}")
    a("""
    v_add_f32 v10, v10, v11
    v_add_f32 v12, v12, v48
    """)
    dpp_reduce("v_add_f32", ["v10", "v12"], QUAD + ["row_half_mirror"])
    a(f"""
    v_mul_f32 v10, {0x3b000000}, v10
    v_mul_f32 v12, {0x3b000000}, v12
    v_fma_f32 v12, -v10, v10, v12
    v_max_f32 v12, 0, v12
    """)
    bf16r("v16", "v10")
    bf16r("v12", "v12")
    a(f"v_add_f32 v12, {0x3727c5ac}, v12")
    bf16r("v12", "v12")
    a("v_sqrt_f32 v12, v12")
    bf16r("v12", "v12")
    a(f"""
    v_rcp_f32 v17, v12
    v_mov_b32 v18, 1
    v_mov_b32 v19, 0
    s_mov_b64 exec, s[70:71]
    ds_write_b128 v6, v[16:19] offset:{L_ST}
    s_mov_b64 exec, -1
    """)
    a("L_kissue:")
    stream_issue(lab="L_kissue0")
    tail_pre()
    for k in range(4):
        a(f"s_waitcnt vmcnt({24-8*k})")
        post()
    stamp(3)
    a("""
    s_cmp_lg_u32 s3, 0
    s_cbranch_scc1 L_kqk
    """)
    a(f"""
    s_lshr_b32 s56, s2, 5
    s_lshl_b32 s57, s56, 14
    s_bfe_u32 s58, s2, {(3 << 16) | 2}
    s_lshl_b32 s58, s58, 6
    s_add_u32 s57, s57, s58
    s_add_u32 s60, s57, {WS_P1}
    s_add_u32 s61, s60, 8192
    s_add_u32 s62, s60, {P1_KQ}
    s_add_u32 s63, s61, {P1_KQ}
    v_lshrrev_b32 v6, 2, v0
    v_lshlrev_b32 v5, 9, v6
    v_lshl_add_u32 v5, v90, 4, v5
    s_lshl_b32 s64, s56, 7
    s_add_u32 s64, s64, {WS_XS}
    v_and_b32 v10, 31, v0
    v_lshlrev_b32 v10, 2, v10
    """)
    if o.get("qdelay"): credit_wait(str(o["qdelay"]))
    if o["noq"]: credit_wait("13")
    else: poll([f"buffer_load_dwordx4 v[{24+4*j}:{27+4*j}], v5, {WS}, s{60+j} offen sc1" for j in range(4)],
         [24 + 4 * j for j in range(4)], sleep=o["qsl"])
    a(f"buffer_load_dword v40, v10, {WS}, s64 offen sc1")
    for i in range(8):
        a(f"v_add_f32 v{24+i}, v{24+i}, v{32+i}")
    a(f"""
    v_cvt_pk_bf16_f32 v32, v24, v25
    v_cvt_pk_bf16_f32 v33, v26, v27
    v_cvt_pk_bf16_f32 v34, v28, v29
    v_cvt_pk_bf16_f32 v35, v30, v31
    v_lshrrev_b32 v8, 5, v0
    v_mul_u32_u24 v8, {QSTR}, v8
    v_and_b32 v9, 31, v0
    v_lshl_add_u32 v8, v9, 3, v8
    ds_write_b64 v8, v[32:33] offset:{L_Q}
    ds_write_b64 v8, v[34:35] offset:{L_Q+2*QSTR}
    """)
    flag_write(L_FQ)
    stamp(2)
    a(f"""
    s_mov_b32 s96, {o['poll']}
    L_xs:
    s_waitcnt vmcnt(0)
    v_xor_b32 v40, s47, v40
    v_cmp_lt_u32 vcc, 15, v40
    s_cbranch_vccz L_xsd
    s_sleep 4
    buffer_load_dword v40, v10, {WS}, s64 offen sc1
    s_sub_u32 s96, s96, 1
    s_cbranch_scc0 L_xs
    s_waitcnt vmcnt(0)
    L_xsd:
    v_cmp_ne_u32 vcc, 0, v40
    s_cmp_eq_u64 vcc, 0
    s_cselect_b32 s57, {2 if o['local'] else 1}, 1
    v_mov_b32 v8, s57
    ds_write_b32 v15, v8 offset:{L_MD}
    s_branch L_kqk2
    """)
    a("L_kqk:")
    spin_flag("v15", L_FQ, sleep=2)
    a(f"""
    L_kqk2:
    v_lshrrev_b32 v6, 2, v2
    v_mul_u32_u24 v5, {QSTR}, v7
    v_lshl_add_u32 v5, v1, 6, v5
    v_lshl_add_u32 v5, v6, 4, v5
    ds_read_b128 v[24:27], v5 offset:{L_Q}
    s_mov_b32 s57, {SCALE}
    s_mov_b32 s69, {LOG2E}
    s_waitcnt lgkmcnt(0)
    """)
    stamp(4)
    def extract(T):
        for jj in range(4):
            D = 32 + 16 * (T & 1) + 4 * jj
            for part in range(4):
                rot = (4 * (jj - part)) % 16
                ctrl = f"row_ror:{rot}" if rot else "quad_perm:[0,1,2,3]"
                if part == 0:
                    a(f"v_mov_b32_dpp v{16+T}, v{D} {ctrl} row_mask:0xf bank_mask:{1<<jj:#x}")
                else:
                    a(f"v_add_f32_dpp v{16+T}, v{D+part}, v{16+T} {ctrl} row_mask:0xf bank_mask:{1<<jj:#x}")
    for T in range(8):
        for jj in range(4):
            kr = 128 + (T * 4 + jj) * 4
            D = 32 + 16 * (T & 1) + 4 * jj
            a(f"v_mfma_f32_16x16x32_bf16 v[{D}:{D+3}], v[{kr}:{kr+3}], v[24:27], 0")
        if T > 0: extract(T - 1)
    extract(7)
    for rnd in range(2):
        for p in range(4):
            a(f"v_cvt_pk_bf16_f32 v{24+p}, v{16+2*p}, v{17+2*p}")
        for p in range(4):
            a(f"v_lshlrev_b32 v{16+2*p}, 16, v{24+p}")
            a(f"v_and_b32 v{17+2*p}, 0xffff0000, v{24+p}")
        if rnd == 0:
            for i in range(8):
                a(f"v_mul_f32 v{16+i}, s57, v{16+i}")
    a("""
    v_max3_f32 v28, v16, v17, v18
    v_max3_f32 v25, v19, v20, v21
    v_max3_f32 v28, v28, v22, v23
    v_max_f32 v28, v28, v25
    """)
    dpp_reduce("v_max_f32", ["v28"], ["row_ror:4", "row_ror:8"])
    swap_reduce("v_max_f32", ["v28"], ["v26"])
    for i in range(8):
        a(f"v_sub_f32 v{16+i}, v{16+i}, v28")
    for i in range(8):
        a(f"v_mul_f32 v{16+i}, s69, v{16+i}")
    for i in range(8):
        a(f"v_exp_f32 v{16+i}, v{16+i}")
    for p in range(4):
        a(f"v_cvt_pk_bf16_f32 v{32+p}, v{16+2*p}, v{17+2*p}")
    a(f"""
    v_lshl_add_u32 v10, v7, 2, v1
    v_mul_u32_u24 v10, 80, v10
    v_lshl_add_u32 v10, v6, 4, v10
    s_mul_i32 s56, s3, {PW}
    v_add_u32 v10, s56, v10
    ds_write_b128 v10, v[32:35] offset:{L_P}
    v_add_f32 v16, v16, v17
    v_add_f32 v18, v18, v19
    v_add_f32 v20, v20, v21
    v_add_f32 v22, v22, v23
    v_add_f32 v16, v16, v18
    v_add_f32 v20, v20, v22
    v_add_f32 v29, v16, v20
    s_lshl_b32 s56, s3, 2
    s_add_u32 s56, s56, {L_FP}
    """)
    flag_write("s56")
    dpp_reduce("v_add_f32", ["v29"], ["row_ror:4", "row_ror:8"])
    swap_reduce("v_add_f32", ["v29"], ["v26"])
    a(f"""
    v_mov_b32 v30, 1
    v_mov_b32 v31, 0
    v_lshlrev_b32 v8, 6, v7
    s_lshl_b32 s56, s3, 4
    v_add_u32 v8, s56, v8
    s_mov_b64 exec, 0xf
    ds_write_b128 v8, v[28:31] offset:{L_MX}
    s_mov_b64 exec, -1
    """)
    stamp(5)
    a(f"""
    s_cmp_eq_u32 s3, 2
    s_cbranch_scc1 L_k2b
    s_cmp_lg_u32 s3, 1
    s_cbranch_scc1 L_kfac
    """)
    a(f"""
    s_lshr_b32 s56, s2, 3
    s_mul_i32 s57, s56, {56*1024}
    s_and_b32 s58, s2, 7
    s_lshl_b32 s60, s58, 7
    s_add_u32 s57, s57, s60
    s_add_u32 s8, s32, s57
    s_addc_u32 s9, s33, 0
    s_and_b32 s9, s9, 0xffff
    s_sub_u32 s10, {1792*1024}, s57
    s_mov_b32 s11, 0x20000
    s_movk_i32 s60, 1024
    """)
    dma_off("v10", "v11", "s60", "v6")
    a(f"""
    v_mov_b32 v16, 0
    v_mov_b32 v17, 0
    v_mov_b32 v18, 0
    v_mov_b32 v19, 0
    ds_write_b128 v84, v[16:19] offset:{L_WD + 7168}
    v_lshrrev_b32 v6, 3, v0
    v_and_b32 v7, 7, v0
    s_mul_i32 s57, s56, 14
    v_add_u32 v20, s57, v7
    v_min_u32 v21, 5, v7
    v_add_u32 v21, s57, v21
    v_add_u32 v21, 8, v21
    """)
    for r in ("v20", "v21"):
        a(f"""
        v_lshrrev_b32 v8, 2, {r}
        v_and_b32 {r}, 3, {r}
        v_lshlrev_b32 {r}, 4, {r}
        v_lshl_add_u32 {r}, v8, 9, {r}
        v_lshl_add_u32 {r}, v6, 6, {r}
        """)
    a(f"""
    s_mov_b32 s60, {WS_P1 + 64*2048}
    s_mov_b32 s61, {WS_P1 + 64*2048 + P1_KQ}
    s_mov_b32 s62, {WS_P1 + 92*2048}
    s_mov_b32 s63, {WS_P1 + 92*2048 + P1_KQ}
    """)
    GL = [f"buffer_load_dwordx4 v[{24+16*rho+4*k}:{27+16*rho+4*k}], {('v20','v21')[rho]}, {WS}, s{60+k} offen sc1" for rho in range(2) for k in range(4)]
    def wd_dma():
        a(f"s_mov_b32 m0, {L_WD}")
        for j in range(7):
            if j == 4: a(f"s_mov_b32 m0, {L_WD + 4096}")
            a(f"s_mov_b32 s64, {j*8192 - (j&3)*1024}")
            a(f"buffer_load_dwordx4 {'v10' if j % 2 == 0 else 'v11'}, s[8:11], s64 offen offset:{(j&3)*1024} nt lds")
    credit_wait(str(o["gthr"] - 2), sleep=4)
    credit_wait(str(o["gthr"]), sleep=1)
    for l in GL: a(l)
    if o["hthr"] > o["gthr"]: credit_wait(str(o["hthr"]), sleep=1)
    wd_dma()
    for i in range(8):
        a(f"s_waitcnt vmcnt({14-i})")
        chk(24 + 4 * i, "v8", i == 0)
    a("""
    v_cmp_ne_u32 vcc, 0, v8
    s_cbranch_vccz L_guok
    """)
    poll(GL, [24 + 4 * j for j in range(8)], sleep=2)
    a("L_guok:")
    G = [f"v{24+16*rho+i}" for rho in range(2) for i in range(4)]
    U = [f"v{32+16*rho+i}" for rho in range(2) for i in range(4)]
    for rho in range(2):
        for i in range(4):
            a(f"v_add_f32 v{24+16*rho+i}, v{24+16*rho+i}, v{28+16*rho+i}")
            a(f"v_add_f32 v{32+16*rho+i}, v{32+16*rho+i}, v{36+16*rho+i}")
    bf16r_n(G + U)
    a(f"s_mov_b32 s57, {LOG2E | 0x80000000}")
    for x in G: a(f"v_mul_f32 {x}, s57, {x}")
    for x in G: a(f"v_exp_f32 {x}, {x}")
    for x in G: a(f"v_add_f32 {x}, 1.0, {x}")
    for x in G: a(f"v_rcp_f32 {x}, {x}")
    bf16r_n(G)
    for x, y in zip(G, U): a(f"v_mul_f32 {x}, {x}, {y}")
    a(f"""
    v_cvt_pk_bf16_f32 v28, v24, v25
    v_cvt_pk_bf16_f32 v29, v26, v27
    v_cvt_pk_bf16_f32 v30, v40, v41
    v_cvt_pk_bf16_f32 v31, v42, v43
    v_cmp_gt_u32 vcc, 6, v7
    v_mul_u32_u24 v8, {HSTR}, v6
    v_lshl_add_u32 v8, v7, 3, v8
    v_cndmask_b32 v30, 0, v30, vcc
    v_cndmask_b32 v31, 0, v31, vcc
    ds_write_b64 v8, v[28:29] offset:{L_H}
    ds_write_b64 v8, v[30:31] offset:{L_H+64}
    v_and_b32 v8, 7, v2
    v_mul_u32_u24 v8, {HSTR}, v8
    v_lshl_add_u32 v8, v1, 4, v8
    ds_read_b128 v[24:27], v8 offset:{L_H}
    ds_read_b128 v[28:31], v8 offset:{L_H+64}
    s_waitcnt vmcnt(0)
    """)
    for nt in range(4):
        a(f"v_xor_b32 v9, {nt << 5}, v88")
        for ks in range(2):
            for hf in range(2):
                r = 128 + 16 * nt + 4 * ks + 2 * hf
                a(f"ds_read_b64_tr_b16 v[{r}:{r+1}], v9 offset:{L_WD + ks*4096 + hf*512}")
    a(f"""
    s_lshl_b32 s57, s58, 16
    s_lshl_b32 s60, s56, 11
    s_add_u32 s57, s57, s60
    s_add_u32 s60, s57, {WS_B}
    s_mov_b32 s66, 0x00ff00ff
    s_mov_b32 s67, 0x00ff00ff
    s_waitcnt lgkmcnt(0)
    """)
    for ks in range(2):
        for nt in range(4):
            r = 128 + 16 * nt + 4 * ks
            c = "0" if ks == 0 else f"v[{32+4*nt}:{35+4*nt}]"
            a(f"v_mfma_f32_16x16x32_bf16 v[{32+4*nt}:{35+4*nt}], v[{r}:{r+3}], v[{24+4*ks}:{27+4*ks}], {c}")
    for nt in range(4): tag(32 + 4 * nt)
    a("s_mov_b64 exec, s[66:67]")
    for nt in range(4):
        if not o["nobs"]: a(f"buffer_store_dwordx4 v[{32+4*nt}:{35+4*nt}], v89, {WS}, s60 offen offset:{nt*512} sc1")
    a("s_mov_b64 exec, -1")
    stamp(2)
    a("s_branch L_fin")
    a(f"""
    L_kfac:
    v_lshrrev_b32 v6, 5, v0
    s_and_b32 s56, s3, 2
    v_add_u32 v6, s56, v6
    v_lshlrev_b32 v10, 6, v6
    """)
    lds_spin([f"ds_read_b128 v[{16+4*j}:{19+4*j}], v10 offset:{L_MX+16*j}" for j in range(4)], ["v18", "v22", "v26", "v30"], sleep=4)
    a(f"""
    v_max3_f32 v32, v16, v20, v24
    v_max_f32 v32, v32, v28
    s_mov_b32 s69, {LOG2E}
    """)
    for j in range(4): a(f"v_sub_f32 v{60+j}, v{16+4*j}, v32")
    for j in range(4): a(f"v_mul_f32 v{60+j}, s69, v{60+j}")
    for j in range(4): a(f"v_exp_f32 v{60+j}, v{60+j}")
    a(f"""
    v_mul_f32 v33, v60, v17
    v_fmac_f32 v33, v61, v21
    v_fmac_f32 v33, v62, v25
    v_fmac_f32 v33, v63, v29
    v_mov_b32 v34, v32
    v_mov_b32 v35, v33
    """)
    tag(32)
    a(f"""
    s_lshr_b32 s56, s2, 5
    s_lshl_b32 s57, s56, 11
    s_bfe_u32 s58, s2, {(3 << 16) | 2}
    s_lshl_b32 s60, s58, 6
    s_add_u32 s57, s57, s60
    s_lshl_b32 s61, s59, 4
    s_add_u32 s57, s57, s61
    s_add_u32 s57, s57, {WS_ML}
    v_lshlrev_b32 v10, 9, v6
    s_mov_b32 s96, {o['spin']}
    L_md:
    ds_read_b32 v8, v15 offset:{L_MD}
    s_waitcnt lgkmcnt(0)
    v_readfirstlane_b32 s70, v8
    s_cmp_lg_u32 s70, 0
    s_cbranch_scc1 L_mdd
    s_sleep 2
    s_sub_u32 s96, s96, 1
    s_cbranch_scc0 L_md
    L_mdd:
    s_mov_b32 s62, 1
    s_mov_b32 s63, 1
    s_mov_b64 exec, s[62:63]
    s_cmp_eq_u32 s70, 2
    s_cbranch_scc1 L_mll
    buffer_store_dwordx4 v[32:35], v10, {WS}, s57 offen sc1
    s_branch L_mld
    L_mll:
    buffer_store_dwordx4 v[32:35], v10, {WS}, s57 offen
    L_mld:
    s_mov_b64 exec, -1
    v_and_b32 v8, 1, v0
    v_lshlrev_b32 v64, 10, v8
    v_lshl_add_u32 v64, v6, 8, v64
    v_and_b32 v9, 31, v0
    v_lshrrev_b32 v8, 1, v9
    v_lshl_add_u32 v64, v8, 4, v64
    v_lshlrev_b32 v65, 14, v6
    v_lshl_add_u32 v65, v9, 6, v65
    s_lshl_b32 s57, s56, 16
    s_lshl_b32 s58, s58, 11
    s_add_u32 s57, s57, s58
    s_add_u32 s57, s57, s61
    s_add_u32 s47, s57, {WS_O}
    s_cmp_lg_u32 s3, 0
    s_cbranch_scc1 L_k3b
    s_lshr_b32 s57, s2, 3
    s_lshl_b32 s57, s57, 9
    s_add_u32 s63, s57, {WS_ML}
    v_lshlrev_b32 v11, 4, v9
    v_lshlrev_b32 v10, 2, v9
    """)
    credit_wait(str(o["mlstart"]), sleep=4)
    poll([f"buffer_load_dwordx4 v[20:23], v11, {WS}, s63 offen sc1"], [20], sleep=4)
    a(f"""
    v_and_b32 v20, 0xffffff00, v20
    v_max_f32_dpp v24, v20, v20 quad_perm:[1,0,3,2] {DPP}
    v_max_f32_dpp v24, v24, v24 quad_perm:[2,3,0,1] {DPP}
    v_sub_f32 v24, v20, v24
    v_mul_f32 v24, s69, v24
    v_exp_f32 v24, v24
    v_mul_f32 v25, v24, v21
    """)
    dpp_reduce("v_add_f32", ["v25"], QUAD)
    a(f"""
    v_rcp_f32 v25, v25
    v_mul_f32 v24, v24, v25
    ds_write_b32 v10, v24 offset:{L_WT}
    ds_write_b32 v15, v14 offset:{L_MD+4}
    """)
    stamp(1)
    a("L_kpub:")
    tail_fetch(sleep=4)
    credit_wait(str(CEND - 2), sleep=4)
    credit_wait(str(CEND), sleep=0)
    stamp(11)
    for w in range(4):
        a(f"ds_read_b128 v[{16+4*w}:{19+4*w}], v64 offset:{L_O + w*2048}")
    for w in range(4):
        a(f"s_waitcnt lgkmcnt({3-w})")
        for i in range(4):
            if w == 0: a(f"v_mul_f32 v{16+i}, v60, v{16+i}")
            else: a(f"v_fmac_f32 v{16+i}, v{60+w}, v{16+4*w+i}")
    tag(16)
    a(f"""
    s_cmp_eq_u32 s70, 2
    s_cbranch_scc0 L_kpg
    buffer_store_dwordx4 v[16:19], v65, {WS}, s47 offen
    """)
    stamp(9)
    a(f"""
    s_branch L_tail
    L_kpg:
    buffer_store_dwordx4 v[16:19], v65, {WS}, s47 offen sc1
    s_branch L_tail
    """)
    a(f"""
    L_k2b:
    s_lshr_b32 s70, s2, 5
    s_lshl_b32 s70, s70, 16
    s_and_b32 s71, s2, 31
    s_lshl_b32 s71, s71, 6
    s_add_u32 s70, s70, s71
    s_and_b32 s61, s2, 7
    s_lshl_b32 s61, s61, 10
    s_lshr_b32 s71, s2, 3
    s_lshl_b32 s71, s71, 5
    s_add_u32 s61, s61, s71
    s_add_u32 s98, s70, {WS_S}
    s_add_u32 s99, s98, 0x8000
    s_add_u32 s52, s70, {WS_B}
    s_add_u32 s53, s52, 0x8000
    v_lshlrev_b32 v91, 3, v90
    v_lshl_add_u32 v91, v1, 1, v91
    buffer_load_ushort v80, v91, s[12:15], s61 offen
    v_lshrrev_b32 v13, 2, v0
    v_lshlrev_b32 v13, 11, v13
    v_lshl_add_u32 v13, v90, 4, v13
    s_mov_b32 s4, s34
    s_and_b32 s5, s35, 0xffff
    s_mov_b32 s6, 8192
    s_mov_b32 s7, 0x20000
    s_mov_b32 s10, 0x000f000f
    s_mov_b32 s11, 0x000f000f
    """)
    def reduce16(base):
        for i in range(4): a(f"v_add_f32 v{base+i}, v{base+i}, v{base+4+i}")
        a(f"""
        v_permlane32_swap_b32 v{base}, v{base+2}
        v_permlane32_swap_b32 v{base+1}, v{base+3}
        v_add_f32 v{base}, v{base}, v{base+2}
        v_add_f32 v{base+1}, v{base+1}, v{base+3}
        v_permlane16_swap_b32 v{base}, v{base+1}
        v_add_f32 v{base}, v{base}, v{base+1}
        """)
        dpp_reduce("v_add_f32", [f"v{base}"], ["row_ror:8", "row_ror:4"])
    def gate():
        reduce16(64)
        bf16r("v64", "v64")
        a(f"""
        v_mul_f32 v65, {LOG2E | 0x80000000}, v64
        v_exp_f32 v65, v65
        v_add_f32 v65, 1.0, v65
        v_rcp_f32 v65, v65
        v_mul_f32 v64, v64, v65
        """)
        bf16r("v64", "v64")
        a("v_lshlrev_b32 v81, 16, v80")
    BL = [f"buffer_load_dwordx4 v[{64+4*j}:{67+4*j}], v13, {WS}, s{52+j} offen sc1" for j in range(2)]
    a("s_mov_b32 s62, 0")
    if o["bstart"]:
        credit_wait(str(o["bstart"]), sleep=4)
        for l in BL: a(l)
        for j in range(2):
            a(f"s_waitcnt vmcnt({1-j})")
            chk(64 + 4 * j, "v8", j == 0)
        a(f"""
        v_cmp_ne_u32 vcc, 0, v8
        s_cbranch_vccnz L_k2c
        s_mov_b32 s62, 1
        """)
        gate()
        a("L_k2c:")
    stamp(2)
    tail_fetch(sleep=4)
    a(f"""
    ds_read_b32 v101, v85 offset:{L_WT - 16}
    s_sub_u32 s47, s46, 2048
    """)
    credit_wait(str(CEND - 1), sleep=4)
    credit_wait(str(CEND), sleep=1)
    stamp(6)
    poll([f"buffer_load_dwordx4 v[16:19], v84, {WS}, s46 offen sc1",
          f"buffer_load_dwordx4 v[20:23], v84, {WS}, s46 offen offset:1024 sc1",
          f"buffer_load_dwordx4 v[24:27], v84, {WS}, s47 offen sc1",
          f"buffer_load_dwordx4 v[28:31], v84, {WS}, s47 offen offset:1024 sc1"], [16, 20, 24, 28])
    a("s_waitcnt lgkmcnt(0)")
    stamp(7)
    for i in range(16):
        a(f"v_mul_f32 v{16+i}, {'v100' if i < 8 else 'v101'}, v{16+i}")
    dpp_reduce("v_add_f32", [f"v{16+i}" for i in range(16)], QUAD)
    for p in range(8):
        a(f"v_cvt_pk_bf16_f32 v{32+p}, v{16+2*p}, v{17+2*p}")
    a(f"""
    s_mov_b64 exec, s[64:65]
    ds_write_b64 v86, v[32:33] offset:{L_OI}
    ds_write_b64 v86, v[34:35] offset:{L_OI+128}
    ds_write_b64 v86, v[36:37] offset:{L_OI-OISTR}
    ds_write_b64 v86, v[38:39] offset:{L_OI-OISTR+128}
    s_mov_b64 exec, 1
    ds_add_u32 v15, v14 offset:{L_TC}
    s_mov_b64 exec, -1
    """)
    if o["d2"]: a(f"s_sleep {o['d2']}")
    SL = [f"buffer_load_dwordx4 v[{16+4*j}:{19+4*j}], v13, {WS}, s{98+j} offen sc1" for j in range(2)]
    a("""
    s_cmp_eq_u32 s62, 1
    s_cbranch_scc1 L_gok
    """)
    for l in BL + SL: a(l)
    for j in range(2):
        a(f"s_waitcnt vmcnt({3-j})")
        chk(64 + 4 * j, "v8", j == 0)
    a("""
    v_cmp_ne_u32 vcc, 0, v8
    s_cbranch_vccz L_bok
    """)
    poll(BL, [64 + 4 * j for j in range(2)])
    a("L_bok:")
    gate()
    for j in range(2):
        a(f"s_waitcnt vmcnt({1-j})")
        chk(16 + 4 * j, "v8", j == 0)
    a("""
    v_cmp_ne_u32 vcc, 0, v8
    s_cbranch_vccz L_sok
    L_gok:
    """)
    poll(SL, [16 + 4 * j for j in range(2)])
    a("L_sok:")
    stamp(9)
    reduce16(16)
    bf16r("v16", "v16")
    a("v_mul_f32 v16, v16, v64")
    bf16r("v16", "v16")
    a(f"""
    v_add_f32 v16, v16, v81
    v_cvt_pk_bf16_f32 v16, v16, v16
    s_mov_b64 exec, s[10:11]
    buffer_store_short v16, v91, s[4:7], s61 offen
    s_cmp_lg_u32 s2, 0
    s_cbranch_scc1 L_fin
    v_mov_b32 v8, {sE1}
    s_mov_b64 exec, 1
    buffer_store_dword v8, v15, {WS}, 0 offen sc1
    s_branch L_fin
    """)
    a(f"""
    L_k3b:
    s_lshr_b32 s56, s2, 3
    s_lshl_b32 s56, s56, 17
    s_and_b32 s57, s2, 7
    s_lshl_b32 s57, s57, 7
    s_add_u32 s56, s56, s57
    s_add_u32 s8, s24, s56
    s_addc_u32 s9, s25, 0
    s_and_b32 s9, s9, 0xffff
    s_sub_u32 s10, {4096*1024}, s56
    s_mov_b32 s11, 0x20000
    s_movk_i32 s60, 1024
    """)
    dma_off("v10", "v11", "s60", "v6")
    for thr_, grp0 in ((o["wothr"], 0), (o["wothr"] + 1, 2)):
        if grp0 == 0: credit_wait(str(thr_ - 3), sleep=4)
        credit_wait(str(thr_), sleep=1)
        for grp in (grp0, grp0 + 1):
            a(f"s_mov_b32 m0, {L_WO + grp*4096}")
            for q in range(4):
                a(f"s_mov_b32 s{60+q}, {(grp*4+q)*8192 - q*1024}")
            for q in range(4):
                a(f"buffer_load_dwordx4 {'v10' if q % 2 == 0 else 'v11'}, s[8:11], s{60+q} offen offset:{q*1024} nt lds")
    stamp(2)
    a("s_branch L_kpub")

    a(f"""
    L_vwave:
    s_add_u32 s4, s20, s56
    s_addc_u32 s5, s21, 0
    s_and_b32 s5, s5, 0xffff
    s_mov_b32 s71, s58
    """)
    late_setup()
    a("s_barrier")
    post()
    a("s_waitcnt lgkmcnt(0)")
    tags_setup()
    tail_pre()
    a(f"""
    s_cmp_ge_u32 s67, 240
    s_cbranch_scc1 L_vnos1
    v_lshlrev_b32 v10, 4, v6
    v_mul_u32_u24 v11, {XNS}, v6
    v_lshl_add_u32 v11, v7, 4, v11
    s_lshl_b32 s66, s71, 7
    v_add_u32 v11, s66, v11
    v_and_b32 v12, 7, v2
    v_mul_u32_u24 v12, {XNS}, v12
    v_lshl_add_u32 v12, v1, 4, v12
    s_lshl_b32 s66, s71, 5
    v_xor_b32 v47, s66, v88
    v_add_u32 v47, {L_W1}, v47
    s_lshr_b32 s66, s67, 1
    s_lshl_b32 s66, s66, 11
    s_mul_i32 s69, s62, {P1_KQ}
    s_add_u32 s66, s66, s69
    s_lshl_b32 s69, s71, 9
    s_add_u32 s66, s66, s69
    s_add_u32 s69, s66, {WS_P1}
    s_lshl_b32 s70, s71, 2
    s_add_u32 s70, s70, {L_F1}
    v_lshlrev_b32 v44, 2, v90
    s_mov_b32 s66, 0x00ff00ff
    s_mov_b32 s67, 0x00ff00ff
    s_waitcnt vmcnt(0)
    s_cmp_lt_u32 s71, 2
    s_cbranch_scc1 L_vnp
    """)
    post()
    a("L_vnp:")
    stamp(1)
    lds_spin([f"ds_read_b128 v[16:19], v10 offset:{L_ST}"], ["v18"])
    for p in range(4):
        a(f"v_lshlrev_b32 v{24+2*p}, 16, v{48+p}")
        a(f"v_and_b32 v{25+2*p}, 0xffff0000, v{48+p}")
    for i in range(8): a(f"v_sub_f32 v{24+i}, v{24+i}, v16")
    for p in range(4): a(f"v_cvt_pk_bf16_f32 v{48+p}, v{24+2*p}, v{25+2*p}")
    for p in range(4):
        a(f"v_lshlrev_b32 v{24+2*p}, 16, v{48+p}")
        a(f"v_and_b32 v{25+2*p}, 0xffff0000, v{48+p}")
    for i in range(8): a(f"v_mul_f32 v{24+i}, v{24+i}, v17")
    for p in range(4): a(f"v_cvt_pk_bf16_f32 v{48+p}, v{24+2*p}, v{25+2*p}")
    a(f"ds_write_b128 v11, v[48:51] offset:{L_XN}")
    flag_write("s70")
    spin_flag("v44", L_F1)
    for ks in range(8):
        a(f"ds_read_b128 v[{128+4*ks}:{131+4*ks}], v12 offset:{L_XN + ks*64}")
        a(f"ds_read_b64_tr_b16 v[{160+4*ks}:{161+4*ks}], v47 offset:{ks*4096}")
        a(f"ds_read_b64_tr_b16 v[{162+4*ks}:{163+4*ks}], v47 offset:{ks*4096 + 512}")
        if ks >= 4:
            k2 = ks - 4
            a(f"s_waitcnt lgkmcnt({12})")
            c = "0" if k2 == 0 else "v[16:19]"
            a(f"v_mfma_f32_16x16x32_bf16 v[16:19], v[{160+4*k2}:{163+4*k2}], v[{128+4*k2}:{131+4*k2}], {c}")
    for k2 in range(4, 8):
        a(f"s_waitcnt lgkmcnt({3*(7-k2)})")
        a(f"v_mfma_f32_16x16x32_bf16 v[16:19], v[{160+4*k2}:{163+4*k2}], v[{128+4*k2}:{131+4*k2}], v[16:19]")
    tag(16)
    a(f"""
    s_mov_b64 exec, s[66:67]
    {'' if o['nop1'] else 'buffer_store_dwordx4 v[16:19], v89, ' + WS + ', s69 offen sc1'}
    s_mov_b64 exec, -1
    """)
    stamp(2)
    a(f"""
    s_branch L_vload
    L_vnos1:
    s_cmp_lt_u32 s71, 2
    s_cbranch_scc1 L_vnp2
    """)
    post()
    a("L_vnp2:")
    a(f"""
    L_vload:
    v_lshlrev_b32 v4, 4, v0
    """)
    for t in range(8):
        a(f"s_mov_b32 s{60+t}, {t*4096}")
    a(f"""
    v_and_b32 v7, 3, v0
    v_lshrrev_b32 v6, 2, v2
    v_mov_b32 v10, 0x0c0c0c0c
    """)
    for tb in range(2):
        lo = 0x0c0c0000 | ((2 * tb + 1) << 8) | (2 * tb)
        hi = ((2 * tb + 1) << 24) | ((2 * tb) << 16) | 0x0c0c
        a(f"""
        v_mov_b32 v11, {lo}
        v_mov_b32 v12, {hi}
        v_cmp_eq_u32 vcc, 0, v7
        v_cndmask_b32 v{32+2*tb}, v10, v11, vcc
        v_cmp_eq_u32 vcc, 1, v7
        v_cndmask_b32 v{32+2*tb}, v{32+2*tb}, v12, vcc
        v_cmp_eq_u32 vcc, 2, v7
        v_cndmask_b32 v{33+2*tb}, v10, v11, vcc
        v_cmp_eq_u32 vcc, 3, v7
        v_cndmask_b32 v{33+2*tb}, v{33+2*tb}, v12, vcc
        """)
    NW = 8
    XW = 40
    for r in range(XW, XW + 4 * NW + 2):
        if (r - XW) % 4 in (0, 1): a(f"v_mov_b32 v{r}, 0")
    a(f"""
    v_lshl_add_u32 v10, v6, 2, v1
    v_mul_u32_u24 v10, 80, v10
    s_mul_i32 s56, s71, {PW}
    v_add_u32 v10, s56, v10
    s_lshl_b32 s56, s71, 2
    v_mov_b32 v11, s56
    s_lshl_b32 s56, s71, 11
    v_lshlrev_b32 v12, 4, v0
    v_add_u32 v12, s56, v12
    s_sub_i32 s70, s68, 4
    """)
    credit_wait("s70", sleep=4)
    stream_issue()
    stamp(3)
    a(f"""
    v_mov_b32 v13, 1
    ds_read_b32 v8, v11 offset:{L_FP}
    s_waitcnt lgkmcnt(0)
    v_cmp_ne_u32 vcc, 1, v8
    s_cbranch_vccz L_pok
    """)
    for k in range(3):
        a(f"s_waitcnt vmcnt({24-8*k})")
        post()
    a("v_mov_b32 v13, 0")
    spin_flag("v11", L_FP)
    a("L_pok:")
    for jj in range(4):
        a(f"ds_read_b128 v[{16+4*jj}:{19+4*jj}], v10 offset:{L_P + jj*16}")
    a("s_waitcnt lgkmcnt(0)")
    stamp(4)
    OA = 76
    def mkx(j):
        T, jj = j >> 2, j & 3
        Wd = XW + 4 * (j % NW)
        r = 16 + 4 * jj + (T >> 1)
        a(f"v_perm_b32 v{Wd+2}, v{r}, v{r}, v{32+2*(T&1)}")
        a(f"v_perm_b32 v{Wd+3}, v{r}, v{r}, v{33+2*(T&1)}")
    for j in range(4): mkx(j)
    for j in range(32):
        Wd = XW + 4 * (j % NW)
        reg = 128 + j * 4
        if j == 24:
            a("""
            s_cmp_lg_u32 s71, 3
            s_cbranch_scc1 L_v3s
            """)
            tail_fetch(sleep=1)
            a("L_v3s:")
        a(f"s_waitcnt vmcnt({31-j})")
        if j % 8 == 7 and j < 31: post("v13")
        c0 = "0" if j == 0 else f"v[{OA}:{OA+3}]"
        c1 = "0" if j == 0 else f"v[{OA+4}:{OA+7}]"
        a(f"v_mfma_f32_16x16x32_bf16 v[{OA}:{OA+3}], v[{Wd+2}:{Wd+5}], v[{reg}:{reg+3}], {c0}")
        a(f"v_mfma_f32_16x16x32_bf16 v[{OA+4}:{OA+7}], v[{Wd}:{Wd+3}], v[{reg}:{reg+3}], {c1}")
        if j + 4 < 32: mkx(j + 4)
    a(f"""
    ds_write_b128 v12, v[{OA}:{OA+3}] offset:{L_O}
    ds_write_b128 v12, v[{OA+4}:{OA+7}] offset:{L_O+1024}
    """)
    post()
    stamp(5)
    a("""
    s_cmp_eq_u32 s71, 3
    s_cbranch_scc1 L_tail
    L_wait:
    """)
    tail_fetch(sleep=4)
    credit_wait(str(CEND - 1), sleep=4)
    credit_wait(str(CEND), sleep=1)
    a(f"""
    L_tail:
    s_mov_b32 s96, {o['poll']}
    """)
    stamp(6)
    a(f"""
    L_op:
    buffer_load_dwordx4 v[16:19], v84, {WS}, s46 offen sc1
    buffer_load_dwordx4 v[20:23], v84, {WS}, s46 offen offset:1024 sc1
    s_waitcnt vmcnt(1)
    """)
    chk(16, "v8", True)
    a("s_waitcnt vmcnt(0)")
    chk(20, "v8", False)
    a(f"""
    v_cmp_ne_u32 vcc, 0, v8
    s_cbranch_vccz L_opd
    s_sub_u32 s96, s96, 1
    s_cbranch_scc0 L_op
    L_opd:
    s_waitcnt lgkmcnt(0)
    """)
    stamp(7)
    for i in range(8):
        a(f"v_mul_f32 v{16+i}, v100, v{16+i}")
    dpp_reduce("v_add_f32", [f"v{16+i}" for i in range(8)], QUAD)
    a(f"""
    v_cvt_pk_bf16_f32 v24, v16, v17
    v_cvt_pk_bf16_f32 v25, v18, v19
    v_cvt_pk_bf16_f32 v26, v20, v21
    v_cvt_pk_bf16_f32 v27, v22, v23
    s_mov_b64 exec, s[64:65]
    ds_write_b64 v86, v[24:25] offset:{L_OI}
    ds_write_b64 v86, v[26:27] offset:{L_OI+128}
    s_mov_b64 exec, 1
    ds_add_u32 v15, v14 offset:{L_TC}
    s_mov_b64 exec, -1
    s_cmp_lt_u32 s3, 4
    s_cbranch_scc1 L_fin
    s_lshl_b32 s57, s3, 5
    s_and_b32 s57, s57, 96
    v_xor_b32 v9, s57, v88
    s_mov_b32 s96, {o['spin']}
    L_tc:
    ds_read_b32 v8, v15 offset:{L_TC}
    s_waitcnt lgkmcnt(0)
    v_readfirstlane_b32 s97, v8
    s_cmp_ge_u32 s97, 7
    s_cbranch_scc1 L_tcd
    s_sub_u32 s96, s96, 1
    s_cbranch_scc0 L_tc
    L_tcd:
    """)
    for ks in range(4):
        a(f"ds_read_b128 v[{16+4*ks}:{19+4*ks}], v87 offset:{L_OI + ks*64}")
        a(f"ds_read_b64_tr_b16 v[{36+4*ks}:{37+4*ks}], v9 offset:{L_WO + ks*4096}")
        a(f"ds_read_b64_tr_b16 v[{38+4*ks}:{39+4*ks}], v9 offset:{L_WO + ks*4096 + 512}")
    for ks in range(4):
        a(f"s_waitcnt lgkmcnt({3*(3-ks)})")
        c = "0" if ks == 0 else "v[32:35]"
        a(f"v_mfma_f32_16x16x32_bf16 v[32:35], v[{36+4*ks}:{39+4*ks}], v[{16+4*ks}:{19+4*ks}], {c}")
    tag(32)
    a(f"""
    s_mov_b64 exec, s[66:67]
    buffer_store_dwordx4 v[32:35], v89, {WS}, s1 offen sc1
    s_mov_b64 exec, -1
    """)
    stamp(8)
    a("L_fin:")
    if diag:
        stamp(10)
        a(f"""
        s_waitcnt lgkmcnt(0)
        s_mov_b64 exec, 1
        s_lshl_b32 s56, s2, 10
        s_lshl_b32 s57, s3, 7
        s_add_u32 s56, s56, s57
        s_add_u32 s38, s38, 0x10000000
        s_addc_u32 s39, s39, 0
        v_mov_b32 v4, s56
        s_getreg_b32 s57, hwreg(HW_REG_XCC_ID)
        s_getreg_b32 s58, hwreg(HW_REG_HW_ID)
        v_mov_b32 v50, s57
        v_mov_b32 v51, s58
        global_store_dwordx2 v4, v[50:51], s[38:39] offset:120
        """)
        for i in range(12):
            a(f"v_mov_b32 v{16+2*i}, s{72+2*i}")
            a(f"v_mov_b32 v{17+2*i}, s{73+2*i}")
            a(f"global_store_dwordx2 v4, v[{16+2*i}:{17+2*i}], s[38:39] offset:{8*i}")
    a("""
    L_end:
    s_endpgm
    """)
    return wrap(a.text(), 256, 512, L_END, 256)

if __name__ == "__main__":
    open("k7.s", "w").write(gen(d2=20))
    V = {"k7_a": dict(gthr=36, hthr=36, wothr=35), "k7_b": dict(gthr=35, hthr=36, wothr=36), "k7_c": dict(gthr=35, hthr=35, wothr=36), "k7_d": dict(gthr=34, hthr=35, wothr=36), "k7_e": dict(gthr=35, hthr=36, wothr=35), "k7_f": dict(gthr=35, hthr=36, wothr=36, d2=26), "k7_g": dict(gthr=35, hthr=36, wothr=36, d2=14), "k7_h": dict(gthr=36, hthr=37, wothr=35)}
    for k, v in V.items():
        d = dict(diag=1, d2=20); d.update(v)
        open(k + ".s", "w").write(gen(**d))
    print(" ".join(k + ".s" for k in V)); print(", ".join('"dev/%s.s"' % k for k in V))
```

```python
import sys
from asmlib import *

WS_XS = 0x1000
WS_P1 = 0x10000
P1_KQ = 120 * 2048
WS_O  = 0x90000
WS_ML = 0x110000
WS_S  = 0x120000
WS_B  = 0x1A0000
WS_SIZE = 0x220000
L_XN   = 0
XNS    = 528
L_Q    = L_XN + 8 * XNS
QSTR   = 272
L_P    = L_Q + 1280
PW     = 1280
L_O    = L_P + 4 * PW
L_OI   = L_O + 8192
OISTR  = 272
L_H    = L_OI + 8 * OISTR
HSTR   = 144
L_FL   = L_H + 8 * HSTR
L_MX   = L_FL
L_ST   = L_MX + 256
L_F1   = L_ST + 128
L_FQ   = L_F1 + 16
L_FP   = L_FQ + 16
L_CR   = L_FP + 16
L_MD   = L_CR + 16
L_TC   = L_MD + 16
L_WT   = L_FL + 512
L_WD   = 24576
L_WO   = 32768
L_W1   = 49152
L_END  = L_W1 + 32768
assert L_WT + 128 <= L_WD
assert L_O % 16 == 0 and L_OI % 16 == 0 and L_H % 16 == 0 and L_FL % 16 == 0 and L_Q % 16 == 0

DPP = "row_mask:0xf bank_mask:0xf"
LOG2E = 0x3fb8aa3b
SCALE = 0x3db504f3
sH, sT = "s40", ["s41", "s42", "s43", "s44"]
sE1 = "s45"
WS = "s[48:51]"
vFF = "v3"
QUAD = ["quad_perm:[1,0,3,2]", "quad_perm:[2,3,0,1]"]
CEND = 38

DESC = '; Fused decode step, one persistent launch: 256 workgroups (one per CU) x 8 waves.\n'

def gen(diag=0, **opts):
    o = dict(spin=400000, poll=40000, W=4, d2=14, bstart=0, wothr=36, mlstart=30, local=1, k0e=1, rot=32, csl=1, qsl=2, noq=0, nogu=0, nobg=0, nop1=0, nobs=0, nowd=0, now1=0, hthr=36, gthr=35, d1=0, rotk=0)
    o.update(opts)
    W = o["W"]
    a = Asm()
    def stamp(i):
        if diag == 1: a(f"s_memrealtime s[{72+2*i}:{73+2*i}]")
        if diag == 2: a(f"s_memtime s[{72+2*i}:{73+2*i}]")
    def bf16r(dst, src):
        a(f"v_cvt_pk_bf16_f32 {dst}, {src}, {src}")
        a(f"v_lshlrev_b32 {dst}, 16, {dst}")
    def bf16r_n(regs):
        for r in regs: a(f"v_cvt_pk_bf16_f32 {r}, {r}, {r}")
        for r in regs: a(f"v_lshlrev_b32 {r}, 16, {r}")
    def tag(base):
        for i in range(4):
            a(f"v_bfi_b32 v{base+i}, {vFF}, {sT[i]}, v{base+i}")
    def chk(base, acc, first):
        for i in range(4):
            a(f"v_msad_u8 {acc}, v{base+i}, {sT[i]}, {'0' if (first and i == 0) else acc}")
    def swap_reduce(op, xs, ts):
        for sw in ("v_permlane16_swap_b32", "v_permlane32_swap_b32"):
            for x, t in zip(xs, ts): a(f"v_mov_b32 {t}, {x}")
            for x, t in zip(xs, ts): a(f"{sw} {x}, {t}")
            for x, t in zip(xs, ts): a(f"{op} {x}, {x}, {t}")
    def dpp_reduce(op, xs, ctrls):
        for c in ctrls:
            for x in xs:
                a(f"{op}_dpp {x}, {x}, {x} {c} {DPP}")
    def lds_spin(reads, flags, sleep=1):
        L = a.label("spin"); D = a.label("spind")
        a(f"s_mov_b32 s96, {o['spin']}")
        a(f"{L}:")
        for r in reads: a(r)
        a("s_waitcnt lgkmcnt(0)")
        if len(flags) == 1:
            f = flags[0]
        else:
            a(f"v_and_b32 v8, {flags[0]}, {flags[1]}")
            a(f"v_and_b32 v9, {flags[2]}, {flags[3]}")
            a(f"v_and_b32 v8, v8, v9")
            f = "v8"
        a(f"""
        v_cmp_ne_u32 vcc, 1, {f}
        s_cbranch_vccz {D}
        s_sleep {sleep}
        s_sub_u32 s96, s96, 1
        s_cbranch_scc0 {L}
        {D}:
        """)
    def spin_flag(addr, off, sleep=1):
        lds_spin([f"ds_read_b32 v8, {addr} offset:{off}"], ["v8"], sleep)
    def credit_wait(need, sleep=1):
        L = a.label("cr"); D = a.label("crd")
        a(f"""
        s_mov_b32 s96, {o['spin']}
        {L}:
        ds_read_b32 v8, v15 offset:{L_CR}
        s_waitcnt lgkmcnt(0)
        v_readfirstlane_b32 s97, v8
        s_cmp_ge_i32 s97, {need}
        s_cbranch_scc1 {D}
        {'s_sleep %d' % sleep if sleep else ''}
        s_sub_u32 s96, s96, 1
        s_cbranch_scc0 {L}
        {D}:
        """)
    def post(inc="v14"):
        a(f"""
        s_mov_b64 exec, 1
        ds_add_u32 v15, {inc} offset:{L_CR}
        s_mov_b64 exec, -1
        """)
    def flag_write(off):
        a(f"""
        v_mov_b32 v9, {off}
        s_mov_b64 exec, 1
        ds_write_b32 v9, v14
        s_mov_b64 exec, -1
        """)
    def tags_setup():
        a(f"""
        s_add_u32 {sE1}, s40, 1
        s_mul_i32 {sH}, {sE1}, 0x9E3779B1
        """)
        for i in range(4):
            a(f"""
            s_bfe_u32 {sT[i]}, {sH}, {(7 << 16) | (7 * i)}
            s_lshl_b32 {sT[i]}, {sT[i]}, 1
            s_or_b32 {sT[i]}, {sT[i]}, 1
            """)
        a(f"""
        s_mov_b32 s48, s38
        s_and_b32 s49, s39, 0xffff
        s_mov_b32 s50, {WS_SIZE}
        s_mov_b32 s51, 0x20000
        """)
    def poll(loads, nreg_bases, acc="v8", sleep=0):
        L = a.label("poll"); D = a.label("polld")
        a(f"s_mov_b32 s96, {o['poll']}")
        a(f"{L}:")
        for l in loads: a(l)
        n = len(loads)
        for i, b in enumerate(nreg_bases):
            a(f"s_waitcnt vmcnt({n-1-i})")
            chk(b, acc, i == 0)
        a(f"""
        v_cmp_ne_u32 vcc, 0, {acc}
        s_cbranch_vccz {D}
        {'s_sleep %d' % sleep if sleep else ''}
        s_sub_u32 s96, s96, 1
        s_cbranch_scc0 {L}
        {D}:
        """)
    def batch(k):
        for i in range(8):
            j = k * 8 + i
            r = 128 + 4 * j
            a(f"buffer_load_dwordx4 v[{r}:{r+3}], v4, s[4:7], s{60+(j>>2)} offen offset:{(j&3)*1024} nt")
    def stream_issue(lab=None):
        assert W >= 4
        for k in range(4):
            if lab and k == o["k0e"]: a(f"{lab}:")
            credit_wait("s68", sleep=o["csl"])
            a("s_add_i32 s68, s68, 1")
            batch(k)
    def sum4(b0, stride):
        for i in range(4):
            a(f"v_add_f32 v{b0+i}, v{b0+i}, v{b0+stride+i}")
            a(f"v_add_f32 v{b0+2*stride+i}, v{b0+2*stride+i}, v{b0+3*stride+i}")
        for i in range(4):
            a(f"v_add_f32 v{b0+i}, v{b0+i}, v{b0+2*stride+i}")
    def late_setup():
        a(f"""
        v_mov_b32 {vFF}, 0xff
        v_mov_b32 v13, 0
        v_mov_b32 v91, 0
        s_lshl_b32 s68, s3, 2
        s_add_i32 s68, s68, {6 - W + 1}
        """)
    def tr_base(dst, tmp1, tmp2):
        a(f"""
        v_lshrrev_b32 {tmp1}, 2, v2
        v_lshl_add_u32 {dst}, v1, 3, {tmp1}
        v_lshlrev_b32 {dst}, 7, {dst}
        v_lshrrev_b32 {tmp1}, 1, {tmp1}
        v_and_b32 {tmp2}, 1, v1
        v_lshl_or_b32 {tmp1}, {tmp2}, 1, {tmp1}
        v_lshl_add_u32 {dst}, {tmp1}, 5, {dst}
        v_lshl_add_u32 {dst}, v90, 3, {dst}
        """)
    def dma_off(d0, d1, stride, tmp):
        a(f"""
        v_lshrrev_b32 {tmp}, 3, v0
        v_and_b32 {d0}, 7, v0
        v_and_b32 {d1}, 2, {tmp}
        v_xor_b32 {d0}, {d0}, {d1}
        v_xor_b32 {d1}, 4, {d0}
        v_mul_lo_u32 {tmp}, {tmp}, {stride}
        v_lshl_add_u32 {d0}, {d0}, 4, {tmp}
        v_lshl_add_u32 {d1}, {d1}, 4, {tmp}
        """)
    def tail_pre():
        a(f"""
        s_lshr_b32 s56, s2, 3
        s_lshl_b32 s57, s56, 14
        s_lshl_b32 s58, s3, 11
        s_add_u32 s46, s57, s58
        s_add_u32 s46, s46, {WS_O}
        v_and_b32 v90, 3, v0
        v_lshrrev_b32 v8, 2, v0
        v_lshlrev_b32 v84, 4, v0
        s_lshl_b32 s58, s3, 4
        v_lshl_add_u32 v85, v90, 2, s58
        s_mul_i32 s57, s3, {OISTR}
        v_lshl_add_u32 v86, v8, 3, s57
        v_and_b32 v87, 7, v2
        v_mul_u32_u24 v87, {OISTR}, v87
        v_lshl_add_u32 v87, v1, 4, v87
        s_and_b32 s57, s2, 7
        s_lshl_b32 s57, s57, 16
        s_lshl_b32 s58, s56, 11
        s_add_u32 s57, s57, s58
        s_and_b32 s58, s3, 3
        s_lshl_b32 s58, s58, 9
        s_add_u32 s57, s57, s58
        s_add_u32 s1, s57, {WS_S}
        v_lshlrev_b32 v89, 6, v2
        v_lshl_add_u32 v89, v1, 4, v89
        """)
        tr_base("v88", "v8", "v9")
    def tail_fetch(sleep=2):
        spin_flag("v15", L_MD + 4, sleep)
        a(f"""
        ds_read_b32 v100, v85 offset:{L_WT}
        s_mov_b32 s64, 0x11111111
        s_mov_b32 s65, 0x11111111
        s_mov_b32 s66, 0x00ff00ff
        s_mov_b32 s67, 0x00ff00ff
        """)

    def combine2(d):
        a(f"""
        ds_read_b32 v101, v85 offset:{L_WT + 16*d}
        s_add_u32 s47, s46, {2048*d & 0xffffffff}
        """)
        stamp(6)
        poll([f"buffer_load_dwordx4 v[16:19], v84, {WS}, s46 offen sc1",
              f"buffer_load_dwordx4 v[20:23], v84, {WS}, s46 offen offset:1024 sc1",
              f"buffer_load_dwordx4 v[24:27], v84, {WS}, s47 offen sc1",
              f"buffer_load_dwordx4 v[28:31], v84, {WS}, s47 offen offset:1024 sc1"], [16, 20, 24, 28])
        a("s_waitcnt lgkmcnt(0)")
        stamp(7)
        for i in range(16):
            a(f"v_mul_f32 v{16+i}, {'v100' if i < 8 else 'v101'}, v{16+i}")
        dpp_reduce("v_add_f32", [f"v{16+i}" for i in range(16)], QUAD)
        for p in range(8):
            a(f"v_cvt_pk_bf16_f32 v{32+p}, v{16+2*p}, v{17+2*p}")
        a(f"""
        s_mov_b64 exec, s[64:65]
        ds_write_b64 v86, v[32:33] offset:{L_OI}
        ds_write_b64 v86, v[34:35] offset:{L_OI+128}
        ds_write_b64 v86, v[36:37] offset:{L_OI+d*OISTR}
        ds_write_b64 v86, v[38:39] offset:{L_OI+d*OISTR+128}
        s_mov_b64 exec, 1
        ds_add_u32 v15, v14 offset:{L_TC}
        s_mov_b64 exec, -1
        """)

    a("; ---- prologue ----")
    a(f"""
    s_cmp_ge_u32 s2, 256
    s_cbranch_scc1 L_end
    s_load_dwordx16 s[16:31], s[0:1], 0
    s_load_dwordx8 s[32:39], s[0:1], 64
    v_lshrrev_b32 v4, 6, v0
    s_and_b32 s3, s2, 7
    s_lshr_b32 s2, s2, 3
    s_lshl_b32 s3, s3, 5
    s_or_b32 s2, s2, s3
    v_readfirstlane_b32 s3, v4
    v_and_b32 v0, 63, v0
    v_lshrrev_b32 v1, 4, v0
    v_and_b32 v2, 15, v0
    v_mov_b32 v14, 0
    v_mov_b32 v15, 0
    v_lshlrev_b32 v5, 3, v0
    ds_write_b64 v5, v[14:15] offset:{L_FL}
    """)
    stamp(0)
    a(f"""
    s_bfe_u32 s56, s2, {(3 << 16) | 2}
    s_lshl_b32 s56, s56, 24
    s_lshr_b32 s57, s2, 5
    s_lshl_b32 s57, s57, 21
    s_add_u32 s56, s56, s57
    s_and_b32 s59, s2, 3
    s_lshl_b32 s57, s59, 17
    s_add_u32 s56, s56, s57
    s_add_u32 s56, s56, 0x180000
    s_and_b32 s58, s3, 3
    s_lshl_b32 s57, s58, 15
    s_add_u32 s56, s56, s57
    s_mov_b32 s6, 32768
    s_mov_b32 s7, 0x20000
    s_mov_b32 s14, 8192
    s_mov_b32 s15, 0x20000
    v_mov_b32 v14, 1
    s_cmp_lt_u32 s3, 4
    s_cbranch_scc1 L_kwave
    """)
    a(f"""
    s_add_u32 s67, s2, {o['rot']}
    s_and_b32 s67, s67, 255
    s_cmp_lt_u32 s67, 128
    s_movk_i32 s60, 3584
    s_cselect_b32 s60, 8192, s60
    s_cselect_b32 s61, 0, 128
    s_cmp_lt_u32 s67, 184
    s_cselect_b32 s61, s61, 184
    s_sub_u32 s61, s67, s61
    s_lshr_b32 s61, s61, 1
    s_and_b32 s62, s67, 1
    s_lshl_b32 s63, s62, 8
    s_lshl_b32 s64, s58, 6
    s_add_u32 s63, s63, s64
    s_mul_i32 s64, s63, s60
    s_lshl_b32 s65, s61, 7
    s_add_u32 s64, s64, s65
    """)
    dma_off("v10", "v11", "s60", "v6")
    a(f"""
    v_lshrrev_b32 v6, 3, v0
    v_and_b32 v7, 7, v0
    v_lshlrev_b32 v5, 10, v6
    v_lshl_add_u32 v5, v7, 4, v5
    s_lshl_b32 s65, s63, 1
    s_lshl_b32 s10, s60, 9
    s_sub_u32 s10, s10, s64
    s_mov_b32 s11, 0x20000
    s_lshl_b32 s69, s60, 3
    s_sub_u32 s70, s69, 1024
    s_lshl_b32 s66, s58, 13
    s_add_u32 s66, s66, {L_W1}
    s_mov_b32 m0, s66
    s_mov_b32 s66, 0
    s_cmp_lt_u32 s67, 184
    s_waitcnt lgkmcnt(0)
    s_cselect_b32 s8, s28, s30
    s_cselect_b32 s9, s29, s31
    s_cmp_lt_u32 s67, 128
    s_cselect_b32 s8, s22, s8
    s_cselect_b32 s9, s23, s9
    s_add_u32 s8, s8, s64
    s_addc_u32 s9, s9, 0
    s_and_b32 s9, s9, 0xffff
    s_mov_b32 s12, s16
    s_and_b32 s13, s17, 0xffff
    s_cmp_ge_u32 s67, 240
    s_cbranch_scc1 L_vstart2
    """)
    for j in range(8):
        if j == 4:
            a("s_add_u32 m0, m0, 4096")
            a("s_lshl_b32 s66, s69, 2")
        a(f"buffer_load_dwordx4 {'v10' if j % 2 == 0 else 'v11'}, s[8:11], s66 offen offset:{(j&3)*1024} nt lds")
        if j not in (3, 7): a("s_add_u32 s66, s66, s70")
    a(f"""
    buffer_load_dwordx4 v[48:51], v5, s[12:15], s65 offen
    L_vstart2:
    s_load_dword s40, s[38:39], 0
    s_branch L_vwave
    """)
    a(f"""
    L_kwave:
    s_mul_i32 s60, s2, {o['rotk'] * 4096}
    s_and_b32 s60, s60, 0x7000
    s_add_u32 s61, s60, 4096
    s_and_b32 s61, s61, 0x7000
    v_lshrrev_b32 v4, 2, v2
    v_lshlrev_b32 v4, 8, v4
    v_and_b32 v7, 3, v0
    v_lshl_add_u32 v4, v7, 4, v4
    v_lshl_add_u32 v4, v1, 6, v4
    v_lshrrev_b32 v6, 3, v0
    v_and_b32 v5, 7, v0
    v_lshlrev_b32 v5, 4, v5
    v_lshl_add_u32 v5, v6, 10, v5
    s_waitcnt lgkmcnt(0)
    s_add_u32 s4, s18, s56
    s_addc_u32 s5, s19, 0
    s_and_b32 s5, s5, 0xffff
    s_mov_b32 s12, s16
    s_and_b32 s13, s17, 0xffff
    s_cmp_eq_u32 s3, 3
    s_cbranch_scc1 L_k3a
    s_cmp_lg_u32 s3, 0
    s_cbranch_scc1 L_k12
    """)
    assert o["k0e"] in (0, 1)
    for k in range(o["k0e"]): batch(k)
    a("s_branch L_k12")
    a("L_k3a:")
    for t in range(8):
        a(f"buffer_load_dwordx4 v[{16+4*t}:{19+4*t}], v5, s[12:15], 0 offen offset:{t*128}")
    a("""
    L_k12:
    s_load_dword s40, s[38:39], 0
    """)
    for t in range(2, 8):
        a(f"s_add_u32 s{60+t}, s{59+t}, 4096")
        a(f"s_and_b32 s{60+t}, s{60+t}, 0x7000")
    late_setup()
    a("s_barrier")
    a("s_waitcnt lgkmcnt(0)")
    tags_setup()
    a(f"""
    s_getreg_b32 s47, hwreg(HW_REG_XCC_ID)
    s_and_b32 s47, s47, 15
    s_and_b32 s57, {sH}, 0xfffffff0
    s_or_b32 s47, s47, s57
    s_cmp_lg_u32 s3, 2
    s_cbranch_scc1 L_knx
    s_lshl_b32 s57, s2, 2
    s_add_u32 s57, s57, {WS_XS}
    v_mov_b32 v8, s47
    s_mov_b64 exec, 1
    buffer_store_dword v8, v15, {WS}, s57 offen sc1
    s_mov_b64 exec, -1
    L_knx:
    s_cmp_eq_u32 s3, 3
    s_cbranch_scc1 L_k3s
    s_cmp_lg_u32 s3, 0
    s_cbranch_scc1 L_kissue
    s_add_i32 s68, s68, {o["k0e"]}
    s_branch L_kissue0
    L_k3s:
    v_mov_b32 v10, 0
    v_mov_b32 v11, 0
    v_mov_b32 v12, 0
    v_mov_b32 v48, 0
    s_mov_b32 s69, 0x3f803f80
    v_lshlrev_b32 v6, 4, v6
    s_mov_b32 s70, 0x01010101
    s_mov_b32 s71, 0x01010101
    """)
    for t in range(8):
        a(f"s_waitcnt vmcnt({7-t})")
        for i in range(4):
            r = 16 + 4 * t + i
            a(f"v_dot2c_f32_bf16 {('v10','v11')[i&1]}, s69, v{r}")
            a(f"v_dot2c_f32_bf16 {('v12','v48')[i&1]}, v{r}, v{r}")
    a("""
    v_add_f32 v10, v10, v11
    v_add_f32 v12, v12, v48
    """)
    dpp_reduce("v_add_f32", ["v10", "v12"], QUAD + ["row_half_mirror"])
    a(f"""
    v_mul_f32 v10, {0x3b000000}, v10
    v_mul_f32 v12, {0x3b000000}, v12
    v_fma_f32 v12, -v10, v10, v12
    v_max_f32 v12, 0, v12
    """)
    bf16r("v16", "v10")
    bf16r("v12", "v12")
    a(f"v_add_f32 v12, {0x3727c5ac}, v12")
    bf16r("v12", "v12")
    a("v_sqrt_f32 v12, v12")
    bf16r("v12", "v12")
    a(f"""
    v_rcp_f32 v17, v12
    v_mov_b32 v18, 1
    v_mov_b32 v19, 0
    s_mov_b64 exec, s[70:71]
    ds_write_b128 v6, v[16:19] offset:{L_ST}
    s_mov_b64 exec, -1
    """)
    a("L_kissue:")
    stream_issue(lab="L_kissue0")
    tail_pre()
    for k in range(4):
        a(f"s_waitcnt vmcnt({24-8*k})")
        post()
    stamp(3)
    a("""
    s_cmp_lg_u32 s3, 0
    s_cbranch_scc1 L_kqk
    """)
    a(f"""
    s_lshr_b32 s56, s2, 5
    s_lshl_b32 s57, s56, 14
    s_bfe_u32 s58, s2, {(3 << 16) | 2}
    s_lshl_b32 s58, s58, 6
    s_add_u32 s57, s57, s58
    s_add_u32 s60, s57, {WS_P1}
    s_add_u32 s61, s60, 8192
    s_add_u32 s62, s60, {P1_KQ}
    s_add_u32 s63, s61, {P1_KQ}
    v_lshrrev_b32 v6, 2, v0
    v_lshlrev_b32 v5, 9, v6
    v_lshl_add_u32 v5, v90, 4, v5
    s_lshl_b32 s64, s56, 7
    s_add_u32 s64, s64, {WS_XS}
    v_and_b32 v10, 31, v0
    v_lshlrev_b32 v10, 2, v10
    """)
    if o.get("qdelay"): credit_wait(str(o["qdelay"]))
    if o["noq"]: credit_wait("13")
    else: poll([f"buffer_load_dwordx4 v[{24+4*j}:{27+4*j}], v5, {WS}, s{60+j} offen sc1" for j in range(4)],
         [24 + 4 * j for j in range(4)], sleep=o["qsl"])
    a(f"buffer_load_dword v40, v10, {WS}, s64 offen sc1")
    for i in range(8):
        a(f"v_add_f32 v{24+i}, v{24+i}, v{32+i}")
    a(f"""
    v_cvt_pk_bf16_f32 v32, v24, v25
    v_cvt_pk_bf16_f32 v33, v26, v27
    v_cvt_pk_bf16_f32 v34, v28, v29
    v_cvt_pk_bf16_f32 v35, v30, v31
    v_lshrrev_b32 v8, 5, v0
    v_mul_u32_u24 v8, {QSTR}, v8
    v_and_b32 v9, 31, v0
    v_lshl_add_u32 v8, v9, 3, v8
    ds_write_b64 v8, v[32:33] offset:{L_Q}
    ds_write_b64 v8, v[34:35] offset:{L_Q+2*QSTR}
    """)
    flag_write(L_FQ)
    stamp(2)
    a(f"""
    s_mov_b32 s96, {o['poll']}
    L_xs:
    s_waitcnt vmcnt(0)
    v_xor_b32 v40, s47, v40
    v_cmp_lt_u32 vcc, 15, v40
    s_cbranch_vccz L_xsd
    s_sleep 4
    buffer_load_dword v40, v10, {WS}, s64 offen sc1
    s_sub_u32 s96, s96, 1
    s_cbranch_scc0 L_xs
    s_waitcnt vmcnt(0)
    L_xsd:
    v_cmp_ne_u32 vcc, 0, v40
    s_cmp_eq_u64 vcc, 0
    s_cselect_b32 s57, {2 if o['local'] else 1}, 1
    v_mov_b32 v8, s57
    ds_write_b32 v15, v8 offset:{L_MD}
    s_branch L_kqk2
    """)
    a("; ---- QK ----")
    a("L_kqk:")
    spin_flag("v15", L_FQ, sleep=2)
    a(f"""
    L_kqk2:
    v_lshrrev_b32 v6, 2, v2
    v_mul_u32_u24 v5, {QSTR}, v7
    v_lshl_add_u32 v5, v1, 6, v5
    v_lshl_add_u32 v5, v6, 4, v5
    ds_read_b128 v[24:27], v5 offset:{L_Q}
    s_mov_b32 s57, {SCALE}
    s_mov_b32 s69, {LOG2E}
    s_waitcnt lgkmcnt(0)
    """)
    stamp(4)
    def extract(T):
        for jj in range(4):
            D = 32 + 16 * (T & 1) + 4 * jj
            for part in range(4):
                rot = (4 * (jj - part)) % 16
                ctrl = f"row_ror:{rot}" if rot else "quad_perm:[0,1,2,3]"
                if part == 0:
                    a(f"v_mov_b32_dpp v{16+T}, v{D} {ctrl} row_mask:0xf bank_mask:{1<<jj:#x}")
                else:
                    a(f"v_add_f32_dpp v{16+T}, v{D+part}, v{16+T} {ctrl} row_mask:0xf bank_mask:{1<<jj:#x}")
    for T in range(8):
        for jj in range(4):
            kr = 128 + (T * 4 + jj) * 4
            D = 32 + 16 * (T & 1) + 4 * jj
            a(f"v_mfma_f32_16x16x32_bf16 v[{D}:{D+3}], v[{kr}:{kr+3}], v[24:27], 0")
        if T > 0: extract(T - 1)
    extract(7)
    for rnd in range(2):
        for p in range(4):
            a(f"v_cvt_pk_bf16_f32 v{24+p}, v{16+2*p}, v{17+2*p}")
        for p in range(4):
            a(f"v_lshlrev_b32 v{16+2*p}, 16, v{24+p}")
            a(f"v_and_b32 v{17+2*p}, 0xffff0000, v{24+p}")
        if rnd == 0:
            for i in range(8):
                a(f"v_mul_f32 v{16+i}, s57, v{16+i}")
    a("""
    v_max3_f32 v28, v16, v17, v18
    v_max3_f32 v25, v19, v20, v21
    v_max3_f32 v28, v28, v22, v23
    v_max_f32 v28, v28, v25
    """)
    dpp_reduce("v_max_f32", ["v28"], ["row_ror:4", "row_ror:8"])
    swap_reduce("v_max_f32", ["v28"], ["v26"])
    for i in range(8):
        a(f"v_sub_f32 v{16+i}, v{16+i}, v28")
    for i in range(8):
        a(f"v_mul_f32 v{16+i}, s69, v{16+i}")
    for i in range(8):
        a(f"v_exp_f32 v{16+i}, v{16+i}")
    for p in range(4):
        a(f"v_cvt_pk_bf16_f32 v{32+p}, v{16+2*p}, v{17+2*p}")
    a(f"""
    v_lshl_add_u32 v10, v7, 2, v1
    v_mul_u32_u24 v10, 80, v10
    v_lshl_add_u32 v10, v6, 4, v10
    s_mul_i32 s56, s3, {PW}
    v_add_u32 v10, s56, v10
    ds_write_b128 v10, v[32:35] offset:{L_P}
    v_add_f32 v16, v16, v17
    v_add_f32 v18, v18, v19
    v_add_f32 v20, v20, v21
    v_add_f32 v22, v22, v23
    v_add_f32 v16, v16, v18
    v_add_f32 v20, v20, v22
    v_add_f32 v29, v16, v20
    s_lshl_b32 s56, s3, 2
    s_add_u32 s56, s56, {L_FP}
    """)
    flag_write("s56")
    dpp_reduce("v_add_f32", ["v29"], ["row_ror:4", "row_ror:8"])
    swap_reduce("v_add_f32", ["v29"], ["v26"])
    a(f"""
    v_mov_b32 v30, 1
    v_mov_b32 v31, 0
    v_lshlrev_b32 v8, 6, v7
    s_lshl_b32 s56, s3, 4
    v_add_u32 v8, s56, v8
    s_mov_b64 exec, 0xf
    ds_write_b128 v8, v[28:31] offset:{L_MX}
    s_mov_b64 exec, -1
    """)
    stamp(5)
    a(f"""
    s_cmp_eq_u32 s3, 2
    s_cbranch_scc1 L_k2b
    s_cmp_lg_u32 s3, 1
    s_cbranch_scc1 L_kfac
    """)
    a("; ---- K1: h chain ----")
    a(f"""
    s_lshr_b32 s56, s2, 3
    s_mul_i32 s57, s56, {56*1024}
    s_and_b32 s58, s2, 7
    s_lshl_b32 s60, s58, 7
    s_add_u32 s57, s57, s60
    s_add_u32 s8, s32, s57
    s_addc_u32 s9, s33, 0
    s_and_b32 s9, s9, 0xffff
    s_sub_u32 s10, {1792*1024}, s57
    s_mov_b32 s11, 0x20000
    s_movk_i32 s60, 1024
    """)
    dma_off("v10", "v11", "s60", "v6")
    a(f"""
    v_mov_b32 v16, 0
    v_mov_b32 v17, 0
    v_mov_b32 v18, 0
    v_mov_b32 v19, 0
    ds_write_b128 v84, v[16:19] offset:{L_WD + 7168}
    v_lshrrev_b32 v6, 3, v0
    v_and_b32 v7, 7, v0
    s_mul_i32 s57, s56, 14
    v_add_u32 v20, s57, v7
    v_min_u32 v21, 5, v7
    v_add_u32 v21, s57, v21
    v_add_u32 v21, 8, v21
    """)
    for r in ("v20", "v21"):
        a(f"""
        v_lshrrev_b32 v8, 2, {r}
        v_and_b32 {r}, 3, {r}
        v_lshlrev_b32 {r}, 4, {r}
        v_lshl_add_u32 {r}, v8, 9, {r}
        v_lshl_add_u32 {r}, v6, 6, {r}
        """)
    a(f"""
    s_mov_b32 s60, {WS_P1 + 64*2048}
    s_mov_b32 s61, {WS_P1 + 64*2048 + P1_KQ}
    s_mov_b32 s62, {WS_P1 + 92*2048}
    s_mov_b32 s63, {WS_P1 + 92*2048 + P1_KQ}
    """)
    GL = [f"buffer_load_dwordx4 v[{24+16*rho+4*k}:{27+16*rho+4*k}], {('v20','v21')[rho]}, {WS}, s{60+k} offen sc1" for rho in range(2) for k in range(4)]
    def wd_dma():
        a(f"s_mov_b32 m0, {L_WD}")
        for j in range(7):
            if j == 4: a(f"s_mov_b32 m0, {L_WD + 4096}")
            a(f"s_mov_b32 s64, {j*8192 - (j&3)*1024}")
            a(f"buffer_load_dwordx4 {'v10' if j % 2 == 0 else 'v11'}, s[8:11], s64 offen offset:{(j&3)*1024} nt lds")
    credit_wait(str(o["gthr"] - 2), sleep=4)
    credit_wait(str(o["gthr"]), sleep=1)
    for l in GL: a(l)
    if o["hthr"] > o["gthr"]: credit_wait(str(o["hthr"]), sleep=1)
    wd_dma()
    for i in range(8):
        a(f"s_waitcnt vmcnt({14-i})")
        chk(24 + 4 * i, "v8", i == 0)
    a("""
    v_cmp_ne_u32 vcc, 0, v8
    s_cbranch_vccz L_guok
    """)
    poll(GL, [24 + 4 * j for j in range(8)], sleep=2)
    a("L_guok:")
    G = [f"v{24+16*rho+i}" for rho in range(2) for i in range(4)]
    U = [f"v{32+16*rho+i}" for rho in range(2) for i in range(4)]
    for rho in range(2):
        for i in range(4):
            a(f"v_add_f32 v{24+16*rho+i}, v{24+16*rho+i}, v{28+16*rho+i}")
            a(f"v_add_f32 v{32+16*rho+i}, v{32+16*rho+i}, v{36+16*rho+i}")
    bf16r_n(G + U)
    a(f"s_mov_b32 s57, {LOG2E | 0x80000000}")
    for x in G: a(f"v_mul_f32 {x}, s57, {x}")
    for x in G: a(f"v_exp_f32 {x}, {x}")
    for x in G: a(f"v_add_f32 {x}, 1.0, {x}")
    for x in G: a(f"v_rcp_f32 {x}, {x}")
    bf16r_n(G)
    for x, y in zip(G, U): a(f"v_mul_f32 {x}, {x}, {y}")
    a(f"""
    v_cvt_pk_bf16_f32 v28, v24, v25
    v_cvt_pk_bf16_f32 v29, v26, v27
    v_cvt_pk_bf16_f32 v30, v40, v41
    v_cvt_pk_bf16_f32 v31, v42, v43
    v_cmp_gt_u32 vcc, 6, v7
    v_mul_u32_u24 v8, {HSTR}, v6
    v_lshl_add_u32 v8, v7, 3, v8
    v_cndmask_b32 v30, 0, v30, vcc
    v_cndmask_b32 v31, 0, v31, vcc
    ds_write_b64 v8, v[28:29] offset:{L_H}
    ds_write_b64 v8, v[30:31] offset:{L_H+64}
    v_and_b32 v8, 7, v2
    v_mul_u32_u24 v8, {HSTR}, v8
    v_lshl_add_u32 v8, v1, 4, v8
    ds_read_b128 v[24:27], v8 offset:{L_H}
    ds_read_b128 v[28:31], v8 offset:{L_H+64}
    s_waitcnt vmcnt(0)
    """)
    for nt in range(4):
        a(f"v_xor_b32 v9, {nt << 5}, v88")
        for ks in range(2):
            for hf in range(2):
                r = 128 + 16 * nt + 4 * ks + 2 * hf
                a(f"ds_read_b64_tr_b16 v[{r}:{r+1}], v9 offset:{L_WD + ks*4096 + hf*512}")
    a(f"""
    s_lshl_b32 s57, s58, 16
    s_lshl_b32 s60, s56, 11
    s_add_u32 s57, s57, s60
    s_add_u32 s60, s57, {WS_B}
    s_mov_b32 s66, 0x00ff00ff
    s_mov_b32 s67, 0x00ff00ff
    s_waitcnt lgkmcnt(0)
    """)
    for ks in range(2):
        for nt in range(4):
            r = 128 + 16 * nt + 4 * ks
            c = "0" if ks == 0 else f"v[{32+4*nt}:{35+4*nt}]"
            a(f"v_mfma_f32_16x16x32_bf16 v[{32+4*nt}:{35+4*nt}], v[{r}:{r+3}], v[{24+4*ks}:{27+4*ks}], {c}")
    for nt in range(4): tag(32 + 4 * nt)
    a("s_mov_b64 exec, s[66:67]")
    for nt in range(4):
        if not o["nobs"]: a(f"buffer_store_dwordx4 v[{32+4*nt}:{35+4*nt}], v89, {WS}, s60 offen offset:{nt*512} sc1")
    a("s_mov_b64 exec, -1")
    stamp(2)
    a("s_branch L_fin")
    a(f"""
    L_kfac:
    v_lshrrev_b32 v6, 5, v0
    s_and_b32 s56, s3, 2
    v_add_u32 v6, s56, v6
    v_lshlrev_b32 v10, 6, v6
    """)
    lds_spin([f"ds_read_b128 v[{16+4*j}:{19+4*j}], v10 offset:{L_MX+16*j}" for j in range(4)], ["v18", "v22", "v26", "v30"], sleep=4)
    a(f"""
    v_max3_f32 v32, v16, v20, v24
    v_max_f32 v32, v32, v28
    s_mov_b32 s69, {LOG2E}
    """)
    for j in range(4): a(f"v_sub_f32 v{60+j}, v{16+4*j}, v32")
    for j in range(4): a(f"v_mul_f32 v{60+j}, s69, v{60+j}")
    for j in range(4): a(f"v_exp_f32 v{60+j}, v{60+j}")
    a(f"""
    v_mul_f32 v33, v60, v17
    v_fmac_f32 v33, v61, v21
    v_fmac_f32 v33, v62, v25
    v_fmac_f32 v33, v63, v29
    v_mov_b32 v34, v32
    v_mov_b32 v35, v33
    """)
    tag(32)
    a(f"""
    s_lshr_b32 s56, s2, 5
    s_lshl_b32 s57, s56, 11
    s_bfe_u32 s58, s2, {(3 << 16) | 2}
    s_lshl_b32 s60, s58, 6
    s_add_u32 s57, s57, s60
    s_lshl_b32 s61, s59, 4
    s_add_u32 s57, s57, s61
    s_add_u32 s57, s57, {WS_ML}
    v_lshlrev_b32 v10, 9, v6
    s_mov_b32 s96, {o['spin']}
    L_md:
    ds_read_b32 v8, v15 offset:{L_MD}
    s_waitcnt lgkmcnt(0)
    v_readfirstlane_b32 s70, v8
    s_cmp_lg_u32 s70, 0
    s_cbranch_scc1 L_mdd
    s_sleep 2
    s_sub_u32 s96, s96, 1
    s_cbranch_scc0 L_md
    L_mdd:
    s_mov_b32 s62, 1
    s_mov_b32 s63, 1
    s_mov_b64 exec, s[62:63]
    s_cmp_eq_u32 s70, 2
    s_cbranch_scc1 L_mll
    buffer_store_dwordx4 v[32:35], v10, {WS}, s57 offen sc1
    s_branch L_mld
    L_mll:
    buffer_store_dwordx4 v[32:35], v10, {WS}, s57 offen
    L_mld:
    s_mov_b64 exec, -1
    v_and_b32 v8, 1, v0
    v_lshlrev_b32 v64, 10, v8
    v_lshl_add_u32 v64, v6, 8, v64
    v_and_b32 v9, 31, v0
    v_lshrrev_b32 v8, 1, v9
    v_lshl_add_u32 v64, v8, 4, v64
    v_lshlrev_b32 v65, 14, v6
    v_lshl_add_u32 v65, v9, 6, v65
    s_lshl_b32 s57, s56, 16
    s_lshl_b32 s58, s58, 11
    s_add_u32 s57, s57, s58
    s_add_u32 s57, s57, s61
    s_add_u32 s47, s57, {WS_O}
    s_cmp_lg_u32 s3, 0
    s_cbranch_scc1 L_k3b
    s_lshr_b32 s57, s2, 3
    s_lshl_b32 s57, s57, 9
    s_add_u32 s63, s57, {WS_ML}
    v_lshlrev_b32 v11, 4, v9
    v_lshlrev_b32 v10, 2, v9
    """)
    credit_wait(str(o["mlstart"]), sleep=4)
    poll([f"buffer_load_dwordx4 v[20:23], v11, {WS}, s63 offen sc1"], [20], sleep=4)
    a(f"""
    v_and_b32 v20, 0xffffff00, v20
    v_max_f32_dpp v24, v20, v20 quad_perm:[1,0,3,2] {DPP}
    v_max_f32_dpp v24, v24, v24 quad_perm:[2,3,0,1] {DPP}
    v_sub_f32 v24, v20, v24
    v_mul_f32 v24, s69, v24
    v_exp_f32 v24, v24
    v_mul_f32 v25, v24, v21
    """)
    dpp_reduce("v_add_f32", ["v25"], QUAD)
    a(f"""
    v_rcp_f32 v25, v25
    v_mul_f32 v24, v24, v25
    ds_write_b32 v10, v24 offset:{L_WT}
    ds_write_b32 v15, v14 offset:{L_MD+4}
    """)
    stamp(1)
    a("L_kpub:")
    tail_fetch(sleep=4)
    credit_wait(str(CEND - 2), sleep=4)
    credit_wait(str(CEND), sleep=0)
    stamp(11)
    for w in range(4):
        a(f"ds_read_b128 v[{16+4*w}:{19+4*w}], v64 offset:{L_O + w*2048}")
    for w in range(4):
        a(f"s_waitcnt lgkmcnt({3-w})")
        for i in range(4):
            if w == 0: a(f"v_mul_f32 v{16+i}, v60, v{16+i}")
            else: a(f"v_fmac_f32 v{16+i}, v{60+w}, v{16+4*w+i}")
    tag(16)
    a(f"""
    s_cmp_eq_u32 s70, 2
    s_cbranch_scc0 L_kpg
    buffer_store_dwordx4 v[16:19], v65, {WS}, s47 offen
    """)
    stamp(9)
    a(f"""
    s_branch L_kpost
    L_kpg:
    buffer_store_dwordx4 v[16:19], v65, {WS}, s47 offen sc1
    L_kpost:
    s_mov_b64 exec, 1
    ds_add_u32 v15, v14 offset:{L_CR}
    s_mov_b64 exec, -1
    s_cmp_eq_u32 s3, 0
    s_cbranch_scc1 L_k0c
    v_mov_b32 v8, 16
    s_waitcnt vmcnt(1)
    s_mov_b64 exec, 1
    ds_add_u32 v15, v8 offset:{L_TC}
    s_mov_b64 exec, -1
    """)
    stamp(7)
    a("""
    s_branch L_fin
    L_k0c:
    """)
    credit_wait(str(CEND + 2), sleep=0)
    if o["d1"]: a(f"s_sleep {o['d1']}")
    combine2(3)
    a("s_branch L_fin")
    a(f"""
    L_k2b:
    s_lshr_b32 s70, s2, 5
    s_lshl_b32 s70, s70, 16
    s_and_b32 s71, s2, 31
    s_lshl_b32 s71, s71, 6
    s_add_u32 s70, s70, s71
    s_and_b32 s61, s2, 7
    s_lshl_b32 s61, s61, 10
    s_lshr_b32 s71, s2, 3
    s_lshl_b32 s71, s71, 5
    s_add_u32 s61, s61, s71
    s_add_u32 s98, s70, {WS_S}
    s_add_u32 s99, s98, 0x8000
    s_add_u32 s52, s70, {WS_B}
    s_add_u32 s53, s52, 0x8000
    v_lshlrev_b32 v91, 3, v90
    v_lshl_add_u32 v91, v1, 1, v91
    buffer_load_ushort v80, v91, s[12:15], s61 offen
    v_lshrrev_b32 v13, 2, v0
    v_lshlrev_b32 v13, 11, v13
    v_lshl_add_u32 v13, v90, 4, v13
    s_mov_b32 s4, s34
    s_and_b32 s5, s35, 0xffff
    s_mov_b32 s6, 8192
    s_mov_b32 s7, 0x20000
    s_mov_b32 s10, 0x000f000f
    s_mov_b32 s11, 0x000f000f
    """)
    def reduce16(base):
        for i in range(4): a(f"v_add_f32 v{base+i}, v{base+i}, v{base+4+i}")
        a(f"""
        v_permlane32_swap_b32 v{base}, v{base+2}
        v_permlane32_swap_b32 v{base+1}, v{base+3}
        v_add_f32 v{base}, v{base}, v{base+2}
        v_add_f32 v{base+1}, v{base+1}, v{base+3}
        v_permlane16_swap_b32 v{base}, v{base+1}
        v_add_f32 v{base}, v{base}, v{base+1}
        """)
        dpp_reduce("v_add_f32", [f"v{base}"], ["row_ror:8", "row_ror:4"])
    def gate():
        reduce16(64)
        bf16r("v64", "v64")
        a(f"""
        v_mul_f32 v65, {LOG2E | 0x80000000}, v64
        v_exp_f32 v65, v65
        v_add_f32 v65, 1.0, v65
        v_rcp_f32 v65, v65
        v_mul_f32 v64, v64, v65
        """)
        bf16r("v64", "v64")
        a("v_lshlrev_b32 v81, 16, v80")
    BL = [f"buffer_load_dwordx4 v[{64+4*j}:{67+4*j}], v13, {WS}, s{52+j} offen sc1" for j in range(2)]
    a("s_mov_b32 s62, 0")
    if o["bstart"]:
        credit_wait(str(o["bstart"]), sleep=4)
        for l in BL: a(l)
        for j in range(2):
            a(f"s_waitcnt vmcnt({1-j})")
            chk(64 + 4 * j, "v8", j == 0)
        a(f"""
        v_cmp_ne_u32 vcc, 0, v8
        s_cbranch_vccnz L_k2c
        s_mov_b32 s62, 1
        """)
        gate()
        a("L_k2c:")
    stamp(2)
    tail_fetch(sleep=4)
    credit_wait(str(CEND - 1), sleep=4)
    credit_wait(str(CEND + 2), sleep=1)
    if o["d1"]: a(f"s_sleep {o['d1']}")
    combine2(-1)
    if o["d2"]: a(f"s_sleep {o['d2']}")
    SL = [f"buffer_load_dwordx4 v[{16+4*j}:{19+4*j}], v13, {WS}, s{98+j} offen sc1" for j in range(2)]
    a("""
    s_cmp_eq_u32 s62, 1
    s_cbranch_scc1 L_gok
    """)
    for l in BL + SL: a(l)
    for j in range(2):
        a(f"s_waitcnt vmcnt({3-j})")
        chk(64 + 4 * j, "v8", j == 0)
    a("""
    v_cmp_ne_u32 vcc, 0, v8
    s_cbranch_vccz L_bok
    """)
    poll(BL, [64 + 4 * j for j in range(2)])
    a("L_bok:")
    gate()
    for j in range(2):
        a(f"s_waitcnt vmcnt({1-j})")
        chk(16 + 4 * j, "v8", j == 0)
    a("""
    v_cmp_ne_u32 vcc, 0, v8
    s_cbranch_vccz L_sok
    L_gok:
    """)
    poll(SL, [16 + 4 * j for j in range(2)])
    a("L_sok:")
    stamp(9)
    reduce16(16)
    bf16r("v16", "v16")
    a("v_mul_f32 v16, v16, v64")
    bf16r("v16", "v16")
    a(f"""
    v_add_f32 v16, v16, v81
    v_cvt_pk_bf16_f32 v16, v16, v16
    s_mov_b64 exec, s[10:11]
    buffer_store_short v16, v91, s[4:7], s61 offen
    s_cmp_lg_u32 s2, 0
    s_cbranch_scc1 L_fin
    v_mov_b32 v8, {sE1}
    s_mov_b64 exec, 1
    buffer_store_dword v8, v15, {WS}, 0 offen sc1
    s_branch L_fin
    """)
    a(f"""
    L_k3b:
    s_lshr_b32 s56, s2, 3
    s_lshl_b32 s56, s56, 17
    s_and_b32 s57, s2, 7
    s_lshl_b32 s57, s57, 7
    s_add_u32 s56, s56, s57
    s_add_u32 s8, s24, s56
    s_addc_u32 s9, s25, 0
    s_and_b32 s9, s9, 0xffff
    s_sub_u32 s10, {4096*1024}, s56
    s_mov_b32 s11, 0x20000
    s_movk_i32 s60, 1024
    """)
    dma_off("v10", "v11", "s60", "v6")
    for thr_, grp0 in ((o["wothr"], 0), (o["wothr"] + 1, 2)):
        if grp0 == 0: credit_wait(str(thr_ - 3), sleep=4)
        credit_wait(str(thr_), sleep=1)
        for grp in (grp0, grp0 + 1):
            a(f"s_mov_b32 m0, {L_WO + grp*4096}")
            for q in range(4):
                a(f"s_mov_b32 s{60+q}, {(grp*4+q)*8192 - q*1024}")
            for q in range(4):
                a(f"buffer_load_dwordx4 {'v10' if q % 2 == 0 else 'v11'}, s[8:11], s{60+q} offen offset:{q*1024} nt lds")
    stamp(2)
    a("s_branch L_kpub")

    a(f"""
    L_vwave:
    s_add_u32 s4, s20, s56
    s_addc_u32 s5, s21, 0
    s_and_b32 s5, s5, 0xffff
    s_mov_b32 s71, s58
    """)
    late_setup()
    a("s_barrier")
    post()
    a("s_waitcnt lgkmcnt(0)")
    tags_setup()
    tail_pre()
    a(f"""
    s_cmp_ge_u32 s67, 240
    s_cbranch_scc1 L_vnos1
    v_lshlrev_b32 v10, 4, v6
    v_mul_u32_u24 v11, {XNS}, v6
    v_lshl_add_u32 v11, v7, 4, v11
    s_lshl_b32 s66, s71, 7
    v_add_u32 v11, s66, v11
    v_and_b32 v12, 7, v2
    v_mul_u32_u24 v12, {XNS}, v12
    v_lshl_add_u32 v12, v1, 4, v12
    s_lshl_b32 s66, s71, 5
    v_xor_b32 v47, s66, v88
    v_add_u32 v47, {L_W1}, v47
    s_lshr_b32 s66, s67, 1
    s_lshl_b32 s66, s66, 11
    s_mul_i32 s69, s62, {P1_KQ}
    s_add_u32 s66, s66, s69
    s_lshl_b32 s69, s71, 9
    s_add_u32 s66, s66, s69
    s_add_u32 s69, s66, {WS_P1}
    s_lshl_b32 s70, s71, 2
    s_add_u32 s70, s70, {L_F1}
    v_lshlrev_b32 v44, 2, v90
    s_mov_b32 s66, 0x00ff00ff
    s_mov_b32 s67, 0x00ff00ff
    s_waitcnt vmcnt(0)
    s_cmp_lt_u32 s71, 2
    s_cbranch_scc1 L_vnp
    """)
    post()
    a("L_vnp:")
    stamp(1)
    lds_spin([f"ds_read_b128 v[16:19], v10 offset:{L_ST}"], ["v18"])
    for p in range(4):
        a(f"v_lshlrev_b32 v{24+2*p}, 16, v{48+p}")
        a(f"v_and_b32 v{25+2*p}, 0xffff0000, v{48+p}")
    for i in range(8): a(f"v_sub_f32 v{24+i}, v{24+i}, v16")
    for p in range(4): a(f"v_cvt_pk_bf16_f32 v{48+p}, v{24+2*p}, v{25+2*p}")
    for p in range(4):
        a(f"v_lshlrev_b32 v{24+2*p}, 16, v{48+p}")
        a(f"v_and_b32 v{25+2*p}, 0xffff0000, v{48+p}")
    for i in range(8): a(f"v_mul_f32 v{24+i}, v{24+i}, v17")
    for p in range(4): a(f"v_cvt_pk_bf16_f32 v{48+p}, v{24+2*p}, v{25+2*p}")
    a(f"ds_write_b128 v11, v[48:51] offset:{L_XN}")
    flag_write("s70")
    spin_flag("v44", L_F1)
    for ks in range(8):
        a(f"ds_read_b128 v[{128+4*ks}:{131+4*ks}], v12 offset:{L_XN + ks*64}")
        a(f"ds_read_b64_tr_b16 v[{160+4*ks}:{161+4*ks}], v47 offset:{ks*4096}")
        a(f"ds_read_b64_tr_b16 v[{162+4*ks}:{163+4*ks}], v47 offset:{ks*4096 + 512}")
        if ks >= 4:
            k2 = ks - 4
            a(f"s_waitcnt lgkmcnt({12})")
            c = "0" if k2 == 0 else "v[16:19]"
            a(f"v_mfma_f32_16x16x32_bf16 v[16:19], v[{160+4*k2}:{163+4*k2}], v[{128+4*k2}:{131+4*k2}], {c}")
    for k2 in range(4, 8):
        a(f"s_waitcnt lgkmcnt({3*(7-k2)})")
        a(f"v_mfma_f32_16x16x32_bf16 v[16:19], v[{160+4*k2}:{163+4*k2}], v[{128+4*k2}:{131+4*k2}], v[16:19]")
    tag(16)
    a(f"""
    s_mov_b64 exec, s[66:67]
    {'' if o['nop1'] else 'buffer_store_dwordx4 v[16:19], v89, ' + WS + ', s69 offen sc1'}
    s_mov_b64 exec, -1
    """)
    stamp(2)
    a(f"""
    s_branch L_vload
    L_vnos1:
    s_cmp_lt_u32 s71, 2
    s_cbranch_scc1 L_vnp2
    """)
    post()
    a("L_vnp2:")
    a(f"""
    L_vload:
    v_lshlrev_b32 v4, 4, v0
    """)
    a(f"s_mul_i32 s60, s2, {o['rotk'] * 4096}")
    a("s_and_b32 s60, s60, 0x7000")
    for t in range(1, 8):
        a(f"s_add_u32 s{60+t}, s{59+t}, 4096")
        a(f"s_and_b32 s{60+t}, s{60+t}, 0x7000")
    a(f"""
    v_and_b32 v7, 3, v0
    v_lshrrev_b32 v6, 2, v2
    v_mov_b32 v10, 0x0c0c0c0c
    """)
    for tb in range(2):
        lo = 0x0c0c0000 | ((2 * tb + 1) << 8) | (2 * tb)
        hi = ((2 * tb + 1) << 24) | ((2 * tb) << 16) | 0x0c0c
        a(f"""
        v_mov_b32 v11, {lo}
        v_mov_b32 v12, {hi}
        v_cmp_eq_u32 vcc, 0, v7
        v_cndmask_b32 v{32+2*tb}, v10, v11, vcc
        v_cmp_eq_u32 vcc, 1, v7
        v_cndmask_b32 v{32+2*tb}, v{32+2*tb}, v12, vcc
        v_cmp_eq_u32 vcc, 2, v7
        v_cndmask_b32 v{33+2*tb}, v10, v11, vcc
        v_cmp_eq_u32 vcc, 3, v7
        v_cndmask_b32 v{33+2*tb}, v{33+2*tb}, v12, vcc
        """)
    NW = 8
    XW = 40
    for r in range(XW, XW + 4 * NW + 2):
        if (r - XW) % 4 in (0, 1): a(f"v_mov_b32 v{r}, 0")
    a(f"""
    v_lshl_add_u32 v10, v6, 2, v1
    v_mul_u32_u24 v10, 80, v10
    s_mul_i32 s56, s71, {PW}
    v_add_u32 v10, s56, v10
    s_lshl_b32 s56, s71, 2
    v_mov_b32 v11, s56
    s_lshl_b32 s56, s71, 11
    v_lshlrev_b32 v12, 4, v0
    v_add_u32 v12, s56, v12
    s_sub_i32 s70, s68, 4
    """)
    credit_wait("s70", sleep=4)
    stream_issue()
    stamp(3)
    a(f"""
    v_mov_b32 v13, 1
    ds_read_b32 v8, v11 offset:{L_FP}
    s_waitcnt lgkmcnt(0)
    v_cmp_ne_u32 vcc, 1, v8
    s_cbranch_vccz L_pok
    """)
    for k in range(3):
        a(f"s_waitcnt vmcnt({24-8*k})")
        post()
    a("v_mov_b32 v13, 0")
    spin_flag("v11", L_FP)
    a("L_pok:")
    for jj in range(4):
        a(f"ds_read_b128 v[{16+4*jj}:{19+4*jj}], v10 offset:{L_P + jj*16}")
    a("s_waitcnt lgkmcnt(0)")
    stamp(4)
    OA = 76
    def mkx(j):
        T, jj = j >> 2, j & 3
        Wd = XW + 4 * (j % NW)
        r = 16 + 4 * jj + (T >> 1)
        a(f"v_perm_b32 v{Wd+2}, v{r}, v{r}, v{32+2*(T&1)}")
        a(f"v_perm_b32 v{Wd+3}, v{r}, v{r}, v{33+2*(T&1)}")
    for j in range(4): mkx(j)
    for j in range(32):
        Wd = XW + 4 * (j % NW)
        reg = 128 + j * 4
        if j == 24:
            a("""
            s_cmp_lg_u32 s71, 3
            s_cbranch_scc1 L_v3s
            """)
            tail_fetch(sleep=1)
            a("L_v3s:")
        a(f"s_waitcnt vmcnt({31-j})")
        if j % 8 == 7 and j < 31: post("v13")
        c0 = "0" if j == 0 else f"v[{OA}:{OA+3}]"
        c1 = "0" if j == 0 else f"v[{OA+4}:{OA+7}]"
        a(f"v_mfma_f32_16x16x32_bf16 v[{OA}:{OA+3}], v[{Wd+2}:{Wd+5}], v[{reg}:{reg+3}], {c0}")
        a(f"v_mfma_f32_16x16x32_bf16 v[{OA+4}:{OA+7}], v[{Wd}:{Wd+3}], v[{reg}:{reg+3}], {c1}")
        if j + 4 < 32: mkx(j + 4)
    a(f"""
    ds_write_b128 v12, v[{OA}:{OA+3}] offset:{L_O}
    ds_write_b128 v12, v[{OA+4}:{OA+7}] offset:{L_O+1024}
    """)
    post()
    stamp(5)
    a("""
    s_cmp_eq_u32 s71, 3
    s_cbranch_scc1 L_wait2
    L_wait:
    """)
    tail_fetch(sleep=4)
    credit_wait(str(CEND - 1), sleep=4)
    a("L_wait2:")
    credit_wait(str(CEND + 2), sleep=1)
    if o["d1"]: a(f"s_sleep {o['d1']}")
    a("; ---- tail ----")
    a(f"""
    L_tail:
    s_mov_b32 s96, {o['poll']}
    """)
    stamp(6)
    a(f"""
    L_op:
    buffer_load_dwordx4 v[16:19], v84, {WS}, s46 offen sc1
    buffer_load_dwordx4 v[20:23], v84, {WS}, s46 offen offset:1024 sc1
    s_waitcnt vmcnt(1)
    """)
    chk(16, "v8", True)
    a("s_waitcnt vmcnt(0)")
    chk(20, "v8", False)
    a(f"""
    v_cmp_ne_u32 vcc, 0, v8
    s_cbranch_vccz L_opd
    s_sub_u32 s96, s96, 1
    s_cbranch_scc0 L_op
    L_opd:
    s_waitcnt lgkmcnt(0)
    """)
    stamp(7)
    for i in range(8):
        a(f"v_mul_f32 v{16+i}, v100, v{16+i}")
    dpp_reduce("v_add_f32", [f"v{16+i}" for i in range(8)], QUAD)
    a(f"""
    v_cvt_pk_bf16_f32 v24, v16, v17
    v_cvt_pk_bf16_f32 v25, v18, v19
    v_cvt_pk_bf16_f32 v26, v20, v21
    v_cvt_pk_bf16_f32 v27, v22, v23
    s_mov_b64 exec, s[64:65]
    ds_write_b64 v86, v[24:25] offset:{L_OI}
    ds_write_b64 v86, v[26:27] offset:{L_OI+128}
    s_mov_b64 exec, 1
    ds_add_u32 v15, v14 offset:{L_TC}
    s_mov_b64 exec, -1
    s_lshl_b32 s57, s3, 5
    s_and_b32 s57, s57, 96
    v_xor_b32 v9, s57, v88
    s_mov_b32 s96, {o['spin']}
    L_tc:
    ds_read_b32 v8, v15 offset:{L_TC}
    s_waitcnt lgkmcnt(0)
    v_readfirstlane_b32 s97, v8
    s_and_b32 s57, s97, 15
    s_cmp_ge_u32 s57, 6
    s_cbranch_scc1 L_tcd
    s_sub_u32 s96, s96, 1
    s_cbranch_scc0 L_tc
    L_tcd:
    """)
    for ks in range(4):
        a(f"ds_read_b128 v[{16+4*ks}:{19+4*ks}], v87 offset:{L_OI + ks*64}")
    a(f"""
    s_cmp_ge_u32 s97, 16
    s_cbranch_scc1 L_twd
    L_tw:
    ds_read_b32 v8, v15 offset:{L_TC}
    s_waitcnt lgkmcnt(0)
    v_readfirstlane_b32 s97, v8
    s_cmp_ge_u32 s97, 16
    s_cbranch_scc1 L_twd
    s_sub_u32 s96, s96, 1
    s_cbranch_scc0 L_tw
    L_twd:
    """)
    stamp(11)
    for ks in range(4):
        a(f"ds_read_b64_tr_b16 v[{36+4*ks}:{37+4*ks}], v9 offset:{L_WO + ks*4096}")
        a(f"ds_read_b64_tr_b16 v[{38+4*ks}:{39+4*ks}], v9 offset:{L_WO + ks*4096 + 512}")
    for ks in range(4):
        a(f"s_waitcnt lgkmcnt({2*(3-ks)})")
        c = "0" if ks == 0 else "v[32:35]"
        a(f"v_mfma_f32_16x16x32_bf16 v[32:35], v[{36+4*ks}:{39+4*ks}], v[{16+4*ks}:{19+4*ks}], {c}")
    tag(32)
    a(f"""
    s_mov_b64 exec, s[66:67]
    buffer_store_dwordx4 v[32:35], v89, {WS}, s1 offen sc1
    s_mov_b64 exec, -1
    """)
    stamp(8)
    a("L_fin:")
    if diag:
        stamp(10)
        a(f"""
        s_waitcnt lgkmcnt(0)
        s_mov_b64 exec, 1
        s_lshl_b32 s56, s2, 10
        s_lshl_b32 s57, s3, 7
        s_add_u32 s56, s56, s57
        s_add_u32 s38, s38, 0x10000000
        s_addc_u32 s39, s39, 0
        v_mov_b32 v4, s56
        s_getreg_b32 s57, hwreg(HW_REG_XCC_ID)
        s_getreg_b32 s58, hwreg(HW_REG_HW_ID)
        v_mov_b32 v50, s57
        v_mov_b32 v51, s58
        global_store_dwordx2 v4, v[50:51], s[38:39] offset:120
        """)
        for i in range(12):
            a(f"v_mov_b32 v{16+2*i}, s{72+2*i}")
            a(f"v_mov_b32 v{17+2*i}, s{73+2*i}")
            a(f"global_store_dwordx2 v4, v[{16+2*i}:{17+2*i}], s[38:39] offset:{8*i}")
    a("""
    L_end:
    s_endpgm
    """)
    return wrap(a.text(), 256, 512, L_END, 256).replace('.amdgcn_target', DESC + '.amdgcn_target', 1)

if __name__ == "__main__":
    import json
    base = dict(d2=24, d1=2)
    open("kfinal.s", "w").write(gen(**base))
    V = json.loads(sys.argv[1]) if len(sys.argv) > 1 else {}
    for k, v in V.items():
        d = dict(diag=1, **base); d.update(v)
        open(k + ".s", "w").write(gen(**d))
    print(" ".join(k + ".s" for k in V)); print(", ".join('"dev/%s.s"' % k for k in V))
```

```python
import sys
from asmlib import *

WS_XS = 0x1000
WS_P1 = 0x10000
P1_KQ = 120 * 2048
WS_O  = 0x90000
WS_ML = 0x110000
WS_S  = 0x120000
WS_B  = 0x1A0000
WS_SIZE = 0x220000
L_XN   = 0
XNS    = 528
L_Q    = L_XN + 8 * XNS
QSTR   = 272
L_P    = L_Q + 1280
PW     = 1280
L_O    = L_P + 4 * PW
L_OI   = L_O + 8192
OISTR  = 272
L_H    = L_OI + 8 * OISTR
HSTR   = 144
L_FL   = L_H + 8 * HSTR
L_MX   = L_FL
L_ST   = L_MX + 256
L_F1   = L_ST + 128
L_FQ   = L_F1 + 16
L_FP   = L_FQ + 16
L_CR   = L_FP + 16
L_MD   = L_CR + 16
L_RL   = L_MD + 16
L_TC   = L_RL + 16
L_WT   = L_FL + 512
L_WO   = 24576
L_WD   = L_WO
L_W1   = 57344
L_END  = L_W1 + 32768
assert L_WT + 128 <= L_WD
assert L_O % 16 == 0 and L_OI % 16 == 0 and L_H % 16 == 0 and L_FL % 16 == 0 and L_Q % 16 == 0

DPP = "row_mask:0xf bank_mask:0xf"
LOG2E = 0x3fb8aa3b
SCALE = 0x3db504f3
sH, sT = "s40", ["s41", "s42", "s43", "s44"]
sE1 = "s45"
WS = "s[48:51]"
vFF = "v3"
QUAD = ["quad_perm:[1,0,3,2]", "quad_perm:[2,3,0,1]"]
CEND = 38

def gen(diag=0, **opts):
    o = dict(spin=400000, poll=40000, W=4, d2=14, bstart=0, wothr=34, mlstart=30, local=1, k0e=1, rot=32, csl=1, qsl=2, noq=0, nogu=0, nobg=0, nop1=0, nobs=0, nowd=0, now1=0, hthr=36, gthr=35, d1=0, tk=28, d3=16)
    o.update(opts)
    W = o["W"]
    a = Asm()
    def stamp(i):
        if diag == 1: a(f"s_memrealtime s[{72+2*i}:{73+2*i}]")
        if diag == 2: a(f"s_memtime s[{72+2*i}:{73+2*i}]")
    def bf16r(dst, src):
        a(f"v_cvt_pk_bf16_f32 {dst}, {src}, {src}")
        a(f"v_lshlrev_b32 {dst}, 16, {dst}")
    def bf16r_n(regs):
        for r in regs: a(f"v_cvt_pk_bf16_f32 {r}, {r}, {r}")
        for r in regs: a(f"v_lshlrev_b32 {r}, 16, {r}")
    def tag(base):
        for i in range(4):
            a(f"v_bfi_b32 v{base+i}, {vFF}, {sT[i]}, v{base+i}")
    def chk(base, acc, first):
        for i in range(4):
            a(f"v_msad_u8 {acc}, v{base+i}, {sT[i]}, {'0' if (first and i == 0) else acc}")
    def swap_reduce(op, xs, ts):
        for sw in ("v_permlane16_swap_b32", "v_permlane32_swap_b32"):
            for x, t in zip(xs, ts): a(f"v_mov_b32 {t}, {x}")
            for x, t in zip(xs, ts): a(f"{sw} {x}, {t}")
            for x, t in zip(xs, ts): a(f"{op} {x}, {x}, {t}")
    def dpp_reduce(op, xs, ctrls):
        for c in ctrls:
            for x in xs:
                a(f"{op}_dpp {x}, {x}, {x} {c} {DPP}")
    def lds_spin(reads, flags, sleep=1):
        L = a.label("spin"); D = a.label("spind")
        a(f"s_mov_b32 s96, {o['spin']}")
        a(f"{L}:")
        for r in reads: a(r)
        a("s_waitcnt lgkmcnt(0)")
        if len(flags) == 1:
            f = flags[0]
        else:
            a(f"v_and_b32 v8, {flags[0]}, {flags[1]}")
            a(f"v_and_b32 v9, {flags[2]}, {flags[3]}")
            a(f"v_and_b32 v8, v8, v9")
            f = "v8"
        a(f"""
        v_cmp_ne_u32 vcc, 1, {f}
        s_cbranch_vccz {D}
        s_sleep {sleep}
        s_sub_u32 s96, s96, 1
        s_cbranch_scc0 {L}
        {D}:
        """)
    def spin_flag(addr, off, sleep=1):
        lds_spin([f"ds_read_b32 v8, {addr} offset:{off}"], ["v8"], sleep)
    def credit_wait(need, sleep=1):
        L = a.label("cr"); D = a.label("crd")
        a(f"""
        s_mov_b32 s96, {o['spin']}
        {L}:
        ds_read_b32 v8, v15 offset:{L_CR}
        s_waitcnt lgkmcnt(0)
        v_readfirstlane_b32 s97, v8
        s_cmp_ge_i32 s97, {need}
        s_cbranch_scc1 {D}
        {'s_sleep %d' % sleep if sleep else ''}
        s_sub_u32 s96, s96, 1
        s_cbranch_scc0 {L}
        {D}:
        """)
    def post(inc="v14"):
        a(f"""
        s_mov_b64 exec, 1
        ds_add_u32 v15, {inc} offset:{L_CR}
        s_mov_b64 exec, -1
        """)
    def flag_write(off):
        a(f"""
        v_mov_b32 v9, {off}
        s_mov_b64 exec, 1
        ds_write_b32 v9, v14
        s_mov_b64 exec, -1
        """)
    def tags_setup():
        a(f"""
        s_add_u32 {sE1}, s40, 1
        s_mul_i32 {sH}, {sE1}, 0x9E3779B1
        """)
        for i in range(4):
            a(f"""
            s_bfe_u32 {sT[i]}, {sH}, {(7 << 16) | (7 * i)}
            s_lshl_b32 {sT[i]}, {sT[i]}, 1
            s_or_b32 {sT[i]}, {sT[i]}, 1
            """)
        a(f"""
        s_mov_b32 s48, s38
        s_and_b32 s49, s39, 0xffff
        s_mov_b32 s50, {WS_SIZE}
        s_mov_b32 s51, 0x20000
        """)
    def poll(loads, nreg_bases, acc="v8", sleep=0):
        L = a.label("poll"); D = a.label("polld")
        a(f"s_mov_b32 s96, {o['poll']}")
        a(f"{L}:")
        for l in loads: a(l)
        n = len(loads)
        for i, b in enumerate(nreg_bases):
            a(f"s_waitcnt vmcnt({n-1-i})")
            chk(b, acc, i == 0)
        a(f"""
        v_cmp_ne_u32 vcc, 0, {acc}
        s_cbranch_vccz {D}
        {'s_sleep %d' % sleep if sleep else ''}
        s_sub_u32 s96, s96, 1
        s_cbranch_scc0 {L}
        {D}:
        """)
    def batch(k):
        for i in range(8):
            j = k * 8 + i
            r = 128 + 4 * j
            a(f"buffer_load_dwordx4 v[{r}:{r+3}], v4, s[4:7], s{60+(j>>2)} offen offset:{(j&3)*1024} nt")
    def stream_issue(lab=None):
        assert W >= 4
        for k in range(4):
            if lab and k == o["k0e"]: a(f"{lab}:")
            credit_wait("s68", sleep=o["csl"])
            a("s_add_i32 s68, s68, 1")
            batch(k)
    def sum4(b0, stride):
        for i in range(4):
            a(f"v_add_f32 v{b0+i}, v{b0+i}, v{b0+stride+i}")
            a(f"v_add_f32 v{b0+2*stride+i}, v{b0+2*stride+i}, v{b0+3*stride+i}")
        for i in range(4):
            a(f"v_add_f32 v{b0+i}, v{b0+i}, v{b0+2*stride+i}")
    def late_setup():
        a(f"""
        v_mov_b32 {vFF}, 0xff
        v_mov_b32 v13, 0
        v_mov_b32 v91, 0
        s_lshl_b32 s68, s3, 2
        s_add_i32 s68, s68, {6 - W + 1}
        """)
    def tr_base(dst, tmp1, tmp2):
        a(f"""
        v_lshrrev_b32 {tmp1}, 2, v2
        v_lshl_add_u32 {dst}, v1, 3, {tmp1}
        v_lshlrev_b32 {dst}, 7, {dst}
        v_lshrrev_b32 {tmp1}, 1, {tmp1}
        v_and_b32 {tmp2}, 1, v1
        v_lshl_or_b32 {tmp1}, {tmp2}, 1, {tmp1}
        v_lshl_add_u32 {dst}, {tmp1}, 5, {dst}
        v_lshl_add_u32 {dst}, v90, 3, {dst}
        """)
    def dma_off(d0, d1, stride, tmp):
        a(f"""
        v_lshrrev_b32 {tmp}, 3, v0
        v_and_b32 {d0}, 7, v0
        v_and_b32 {d1}, 2, {tmp}
        v_xor_b32 {d0}, {d0}, {d1}
        v_xor_b32 {d1}, 4, {d0}
        v_mul_lo_u32 {tmp}, {tmp}, {stride}
        v_lshl_add_u32 {d0}, {d0}, 4, {tmp}
        v_lshl_add_u32 {d1}, {d1}, 4, {tmp}
        """)
    def tail_pre():
        a(f"""
        v_and_b32 v90, 3, v0
        v_lshrrev_b32 v8, 2, v0
        v_lshlrev_b32 v84, 4, v0
        s_lshl_b32 s58, s3, 4
        v_lshl_add_u32 v85, v90, 2, s58
        s_mul_i32 s57, s3, {OISTR}
        v_lshl_add_u32 v86, v8, 3, s57
        v_and_b32 v87, 7, v2
        v_mul_u32_u24 v87, {OISTR}, v87
        v_lshl_add_u32 v87, v1, 4, v87
        v_lshlrev_b32 v89, 6, v2
        v_lshl_add_u32 v89, v1, 4, v89
        """)
        tr_base("v88", "v8", "v9")
    def tail_fetch(sleep=2):
        L = a.label("tf"); D = a.label("tfd")
        a(f"""
        s_mov_b32 s96, {o['spin']}
        {L}:
        ds_read_b64 v[8:9], v15 offset:{L_MD+8}
        s_waitcnt lgkmcnt(0)
        v_readfirstlane_b32 s63, v8
        v_readfirstlane_b32 s56, v9
        s_cmp_lg_u32 s63, 0
        s_cbranch_scc1 {D}
        s_sleep {sleep}
        s_sub_u32 s96, s96, 1
        s_cbranch_scc0 {L}
        {D}:
        ds_read_b32 v100, v85 offset:{L_WT}
        s_lshr_b32 s57, s56, 3
        s_lshl_b32 s46, s57, 14
        s_lshl_b32 s58, s3, 11
        s_add_u32 s46, s46, s58
        s_add_u32 s46, s46, {WS_O}
        s_and_b32 s56, s56, 7
        s_lshl_b32 s56, s56, 16
        s_lshl_b32 s57, s57, 11
        s_add_u32 s56, s56, s57
        s_and_b32 s58, s3, 3
        s_lshl_b32 s58, s58, 9
        s_add_u32 s56, s56, s58
        s_add_u32 s1, s56, {WS_S}
        s_add_u32 s0, s1, 0x10000
        s_mov_b32 s64, 0x11111111
        s_mov_b32 s65, 0x11111111
        s_mov_b32 s66, 0x00ff00ff
        s_mov_b32 s67, 0x00ff00ff
        """)
    def role_wait():
        L = a.label("rw"); D = a.label("rwd")
        a(f"""
        s_mov_b32 s96, {o['spin']}
        {L}:
        ds_read_b32 v8, v15 offset:{L_RL}
        s_waitcnt lgkmcnt(0)
        v_readfirstlane_b32 s55, v8
        s_cmp_lg_u32 s55, 0
        s_cbranch_scc1 {D}
        s_sleep 4
        s_sub_u32 s96, s96, 1
        s_cbranch_scc0 {L}
        {D}:
        s_sub_u32 s55, s55, 1
        """)
        role_unit()
    def role_unit():
        a(f"""
        s_and_b32 s54, s55, 15
        s_lshl_b32 s54, s54, 1
        s_and_b32 s53, s2, 0xe0
        s_or_b32 s54, s54, s53
        """)

    def combine2(d):
        a(f"""
        ds_read_b32 v101, v85 offset:{L_WT + 16*d}
        s_add_u32 s47, s46, {2048*d & 0xffffffff}
        """)
        stamp(6)
        poll([f"buffer_load_dwordx4 v[16:19], v84, {WS}, s46 offen sc1",
              f"buffer_load_dwordx4 v[20:23], v84, {WS}, s46 offen offset:1024 sc1",
              f"buffer_load_dwordx4 v[24:27], v84, {WS}, s47 offen sc1",
              f"buffer_load_dwordx4 v[28:31], v84, {WS}, s47 offen offset:1024 sc1"], [16, 20, 24, 28])
        a("s_waitcnt lgkmcnt(0)")
        stamp(7)
        for i in range(16):
            a(f"v_mul_f32 v{16+i}, {'v100' if i < 8 else 'v101'}, v{16+i}")
        dpp_reduce("v_add_f32", [f"v{16+i}" for i in range(16)], QUAD)
        for p in range(8):
            a(f"v_cvt_pk_bf16_f32 v{32+p}, v{16+2*p}, v{17+2*p}")
        a(f"""
        s_mov_b64 exec, s[64:65]
        ds_write_b64 v86, v[32:33] offset:{L_OI}
        ds_write_b64 v86, v[34:35] offset:{L_OI+128}
        ds_write_b64 v86, v[36:37] offset:{L_OI+d*OISTR}
        ds_write_b64 v86, v[38:39] offset:{L_OI+d*OISTR+128}
        s_mov_b64 exec, 1
        ds_add_u32 v15, v14 offset:{L_TC}
        s_mov_b64 exec, -1
        """)

    a(f"""
    s_cmp_ge_u32 s2, 256
    s_cbranch_scc1 L_end
    s_load_dwordx16 s[16:31], s[0:1], 0
    s_load_dwordx8 s[32:39], s[0:1], 64
    v_lshrrev_b32 v4, 6, v0
    s_and_b32 s3, s2, 7
    s_lshr_b32 s2, s2, 3
    s_lshl_b32 s3, s3, 5
    s_or_b32 s2, s2, s3
    v_readfirstlane_b32 s3, v4
    v_and_b32 v0, 63, v0
    v_lshrrev_b32 v1, 4, v0
    v_and_b32 v2, 15, v0
    v_mov_b32 v14, 0
    v_mov_b32 v15, 0
    v_lshlrev_b32 v5, 3, v0
    ds_write_b64 v5, v[14:15] offset:{L_FL}
    """)
    stamp(0)
    a(f"""
    s_bfe_u32 s56, s2, {(3 << 16) | 2}
    s_lshl_b32 s56, s56, 24
    s_lshr_b32 s57, s2, 5
    s_lshl_b32 s57, s57, 21
    s_add_u32 s56, s56, s57
    s_and_b32 s59, s2, 3
    s_lshl_b32 s57, s59, 17
    s_add_u32 s56, s56, s57
    s_add_u32 s56, s56, 0x180000
    s_and_b32 s58, s3, 3
    s_lshl_b32 s57, s58, 15
    s_add_u32 s56, s56, s57
    s_mov_b32 s6, 32768
    s_mov_b32 s7, 0x20000
    s_mov_b32 s14, 8192
    s_mov_b32 s15, 0x20000
    v_mov_b32 v14, 1
    s_cmp_lt_u32 s3, 4
    s_cbranch_scc1 L_kwave
    """)
    a(f"""
    s_add_u32 s67, s2, {o['rot']}
    s_and_b32 s67, s67, 255
    s_cmp_lt_u32 s67, 128
    s_movk_i32 s60, 3584
    s_cselect_b32 s60, 8192, s60
    s_cselect_b32 s61, 0, 128
    s_cmp_lt_u32 s67, 184
    s_cselect_b32 s61, s61, 184
    s_sub_u32 s61, s67, s61
    s_lshr_b32 s61, s61, 1
    s_and_b32 s62, s67, 1
    s_lshl_b32 s63, s62, 8
    s_lshl_b32 s64, s58, 6
    s_add_u32 s63, s63, s64
    s_mul_i32 s64, s63, s60
    s_lshl_b32 s65, s61, 7
    s_add_u32 s64, s64, s65
    """)
    dma_off("v10", "v11", "s60", "v6")
    a(f"""
    v_lshrrev_b32 v6, 3, v0
    v_and_b32 v7, 7, v0
    v_lshlrev_b32 v5, 10, v6
    v_lshl_add_u32 v5, v7, 4, v5
    s_lshl_b32 s65, s63, 1
    s_lshl_b32 s10, s60, 9
    s_sub_u32 s10, s10, s64
    s_mov_b32 s11, 0x20000
    s_lshl_b32 s69, s60, 3
    s_sub_u32 s70, s69, 1024
    s_lshl_b32 s66, s58, 13
    s_add_u32 s66, s66, {L_W1}
    s_mov_b32 m0, s66
    s_mov_b32 s66, 0
    s_cmp_lt_u32 s67, 184
    s_waitcnt lgkmcnt(0)
    s_cselect_b32 s8, s28, s30
    s_cselect_b32 s9, s29, s31
    s_cmp_lt_u32 s67, 128
    s_cselect_b32 s8, s22, s8
    s_cselect_b32 s9, s23, s9
    s_add_u32 s8, s8, s64
    s_addc_u32 s9, s9, 0
    s_and_b32 s9, s9, 0xffff
    s_mov_b32 s12, s16
    s_and_b32 s13, s17, 0xffff
    s_cmp_ge_u32 s67, 240
    s_cbranch_scc1 L_vstart2
    """)
    for j in range(8):
        if j == 4:
            a("s_add_u32 m0, m0, 4096")
            a("s_lshl_b32 s66, s69, 2")
        a(f"buffer_load_dwordx4 {'v10' if j % 2 == 0 else 'v11'}, s[8:11], s66 offen offset:{(j&3)*1024} nt lds")
        if j not in (3, 7): a("s_add_u32 s66, s66, s70")
    a(f"""
    buffer_load_dwordx4 v[48:51], v5, s[12:15], s65 offen
    L_vstart2:
    s_load_dword s40, s[38:39], 0
    s_branch L_vwave
    """)
    a(f"""
    L_kwave:
    s_mov_b32 s60, 0
    s_mov_b32 s61, 4096
    v_lshrrev_b32 v4, 2, v2
    v_lshlrev_b32 v4, 8, v4
    v_and_b32 v7, 3, v0
    v_lshl_add_u32 v4, v7, 4, v4
    v_lshl_add_u32 v4, v1, 6, v4
    v_lshrrev_b32 v6, 3, v0
    v_and_b32 v5, 7, v0
    v_lshlrev_b32 v5, 4, v5
    v_lshl_add_u32 v5, v6, 10, v5
    s_waitcnt lgkmcnt(0)
    s_add_u32 s4, s18, s56
    s_addc_u32 s5, s19, 0
    s_and_b32 s5, s5, 0xffff
    s_mov_b32 s12, s16
    s_and_b32 s13, s17, 0xffff
    s_cmp_eq_u32 s3, 3
    s_cbranch_scc1 L_k3a
    s_cmp_lg_u32 s3, 0
    s_cbranch_scc1 L_k12
    """)
    assert o["k0e"] in (0, 1)
    for k in range(o["k0e"]): batch(k)
    a("s_branch L_k12")
    a("L_k3a:")
    for t in range(8):
        a(f"buffer_load_dwordx4 v[{16+4*t}:{19+4*t}], v5, s[12:15], 0 offen offset:{t*128}")
    a("""
    L_k12:
    s_load_dword s40, s[38:39], 0
    """)
    for t in range(2, 8):
        a(f"s_mov_b32 s{60+t}, {t*4096}")
    late_setup()
    a("s_barrier")
    a("s_waitcnt lgkmcnt(0)")
    tags_setup()
    a(f"""
    s_getreg_b32 s47, hwreg(HW_REG_XCC_ID)
    s_and_b32 s47, s47, 15
    s_and_b32 s57, {sH}, 0xfffffff0
    s_or_b32 s47, s47, s57
    s_cmp_lg_u32 s3, 2
    s_cbranch_scc1 L_knx
    s_lshl_b32 s57, s2, 2
    s_add_u32 s57, s57, {WS_XS}
    v_mov_b32 v8, s47
    s_mov_b64 exec, 1
    buffer_store_dword v8, v15, {WS}, s57 offen sc1
    s_mov_b64 exec, -1
    L_knx:
    s_cmp_eq_u32 s3, 3
    s_cbranch_scc1 L_k3s
    s_cmp_lg_u32 s3, 0
    s_cbranch_scc1 L_kissue
    s_add_i32 s68, s68, {o["k0e"]}
    s_branch L_kissue0
    L_k3s:
    v_mov_b32 v10, 0
    v_mov_b32 v11, 0
    v_mov_b32 v12, 0
    v_mov_b32 v48, 0
    s_mov_b32 s69, 0x3f803f80
    v_lshlrev_b32 v6, 4, v6
    s_mov_b32 s70, 0x01010101
    s_mov_b32 s71, 0x01010101
    """)
    for t in range(8):
        a(f"s_waitcnt vmcnt({7-t})")
        for i in range(4):
            r = 16 + 4 * t + i
            a(f"v_dot2c_f32_bf16 {('v10','v11')[i&1]}, s69, v{r}")
            a(f"v_dot2c_f32_bf16 {('v12','v48')[i&1]}, v{r}, v{r}")
    a("""
    v_add_f32 v10, v10, v11
    v_add_f32 v12, v12, v48
    """)
    dpp_reduce("v_add_f32", ["v10", "v12"], QUAD + ["row_half_mirror"])
    a(f"""
    v_mul_f32 v10, {0x3b000000}, v10
    v_mul_f32 v12, {0x3b000000}, v12
    v_fma_f32 v12, -v10, v10, v12
    v_max_f32 v12, 0, v12
    """)
    bf16r("v16", "v10")
    bf16r("v12", "v12")
    a(f"v_add_f32 v12, {0x3727c5ac}, v12")
    bf16r("v12", "v12")
    a("v_sqrt_f32 v12, v12")
    bf16r("v12", "v12")
    a(f"""
    v_rcp_f32 v17, v12
    v_mov_b32 v18, 1
    v_mov_b32 v19, 0
    s_mov_b64 exec, s[70:71]
    ds_write_b128 v6, v[16:19] offset:{L_ST}
    s_mov_b64 exec, -1
    """)
    a("L_kissue:")
    stream_issue(lab="L_kissue0")
    tail_pre()
    for k in range(4):
        a(f"s_waitcnt vmcnt({24-8*k})")
        post()
    stamp(3)
    a("""
    s_cmp_lg_u32 s3, 0
    s_cbranch_scc1 L_kqk
    """)
    a(f"""
    s_lshr_b32 s56, s2, 5
    s_lshl_b32 s57, s56, 14
    s_bfe_u32 s58, s2, {(3 << 16) | 2}
    s_lshl_b32 s58, s58, 6
    s_add_u32 s57, s57, s58
    s_add_u32 s60, s57, {WS_P1}
    s_add_u32 s61, s60, 8192
    s_add_u32 s62, s60, {P1_KQ}
    s_add_u32 s63, s61, {P1_KQ}
    v_lshrrev_b32 v6, 2, v0
    v_lshlrev_b32 v5, 9, v6
    v_lshl_add_u32 v5, v90, 4, v5
    s_lshl_b32 s64, s56, 7
    s_add_u32 s64, s64, {WS_XS}
    v_and_b32 v10, 31, v0
    v_lshlrev_b32 v10, 2, v10
    """)
    if o.get("qdelay"): credit_wait(str(o["qdelay"]))
    if o["noq"]: credit_wait("13")
    else: poll([f"buffer_load_dwordx4 v[{24+4*j}:{27+4*j}], v5, {WS}, s{60+j} offen sc1" for j in range(4)],
         [24 + 4 * j for j in range(4)], sleep=o["qsl"])
    a(f"buffer_load_dword v40, v10, {WS}, s64 offen sc1")
    for i in range(8):
        a(f"v_add_f32 v{24+i}, v{24+i}, v{32+i}")
    a(f"""
    v_cvt_pk_bf16_f32 v32, v24, v25
    v_cvt_pk_bf16_f32 v33, v26, v27
    v_cvt_pk_bf16_f32 v34, v28, v29
    v_cvt_pk_bf16_f32 v35, v30, v31
    v_lshrrev_b32 v8, 5, v0
    v_mul_u32_u24 v8, {QSTR}, v8
    v_and_b32 v9, 31, v0
    v_lshl_add_u32 v8, v9, 3, v8
    ds_write_b64 v8, v[32:33] offset:{L_Q}
    ds_write_b64 v8, v[34:35] offset:{L_Q+2*QSTR}
    """)
    flag_write(L_FQ)
    stamp(2)
    a(f"""
    s_mov_b32 s96, {o['poll']}
    L_xs:
    s_waitcnt vmcnt(0)
    v_xor_b32 v40, s47, v40
    v_cmp_lt_u32 vcc, 15, v40
    s_cbranch_vccz L_xsd
    s_sleep 4
    buffer_load_dword v40, v10, {WS}, s64 offen sc1
    s_sub_u32 s96, s96, 1
    s_cbranch_scc0 L_xs
    s_waitcnt vmcnt(0)
    L_xsd:
    v_cmp_ne_u32 vcc, 0, v40
    s_cmp_eq_u64 vcc, 0
    s_cselect_b32 s57, {2 if o['local'] else 1}, 1
    v_mov_b32 v8, s57
    ds_write_b32 v15, v8 offset:{L_MD}
    s_branch L_kqk2
    """)
    a("L_kqk:")
    spin_flag("v15", L_FQ, sleep=2)
    a(f"""
    L_kqk2:
    v_lshrrev_b32 v6, 2, v2
    v_mul_u32_u24 v5, {QSTR}, v7
    v_lshl_add_u32 v5, v1, 6, v5
    v_lshl_add_u32 v5, v6, 4, v5
    ds_read_b128 v[24:27], v5 offset:{L_Q}
    s_mov_b32 s57, {SCALE}
    s_mov_b32 s69, {LOG2E}
    s_waitcnt lgkmcnt(0)
    """)
    stamp(4)
    def extract(T):
        for jj in range(4):
            D = 32 + 16 * (T & 1) + 4 * jj
            for part in range(4):
                rot = (4 * (jj - part)) % 16
                ctrl = f"row_ror:{rot}" if rot else "quad_perm:[0,1,2,3]"
                if part == 0:
                    a(f"v_mov_b32_dpp v{16+T}, v{D} {ctrl} row_mask:0xf bank_mask:{1<<jj:#x}")
                else:
                    a(f"v_add_f32_dpp v{16+T}, v{D+part}, v{16+T} {ctrl} row_mask:0xf bank_mask:{1<<jj:#x}")
    for T in range(8):
        for jj in range(4):
            kr = 128 + (T * 4 + jj) * 4
            D = 32 + 16 * (T & 1) + 4 * jj
            a(f"v_mfma_f32_16x16x32_bf16 v[{D}:{D+3}], v[{kr}:{kr+3}], v[24:27], 0")
        if T > 0: extract(T - 1)
    extract(7)
    for rnd in range(2):
        for p in range(4):
            a(f"v_cvt_pk_bf16_f32 v{24+p}, v{16+2*p}, v{17+2*p}")
        for p in range(4):
            a(f"v_lshlrev_b32 v{16+2*p}, 16, v{24+p}")
            a(f"v_and_b32 v{17+2*p}, 0xffff0000, v{24+p}")
        if rnd == 0:
            for i in range(8):
                a(f"v_mul_f32 v{16+i}, s57, v{16+i}")
    a("""
    v_max3_f32 v28, v16, v17, v18
    v_max3_f32 v25, v19, v20, v21
    v_max3_f32 v28, v28, v22, v23
    v_max_f32 v28, v28, v25
    """)
    dpp_reduce("v_max_f32", ["v28"], ["row_ror:4", "row_ror:8"])
    swap_reduce("v_max_f32", ["v28"], ["v26"])
    for i in range(8):
        a(f"v_sub_f32 v{16+i}, v{16+i}, v28")
    for i in range(8):
        a(f"v_mul_f32 v{16+i}, s69, v{16+i}")
    for i in range(8):
        a(f"v_exp_f32 v{16+i}, v{16+i}")
    for p in range(4):
        a(f"v_cvt_pk_bf16_f32 v{32+p}, v{16+2*p}, v{17+2*p}")
    a(f"""
    v_lshl_add_u32 v10, v7, 2, v1
    v_mul_u32_u24 v10, 80, v10
    v_lshl_add_u32 v10, v6, 4, v10
    s_mul_i32 s56, s3, {PW}
    v_add_u32 v10, s56, v10
    ds_write_b128 v10, v[32:35] offset:{L_P}
    v_add_f32 v16, v16, v17
    v_add_f32 v18, v18, v19
    v_add_f32 v20, v20, v21
    v_add_f32 v22, v22, v23
    v_add_f32 v16, v16, v18
    v_add_f32 v20, v20, v22
    v_add_f32 v29, v16, v20
    s_lshl_b32 s56, s3, 2
    s_add_u32 s56, s56, {L_FP}
    """)
    flag_write("s56")
    dpp_reduce("v_add_f32", ["v29"], ["row_ror:4", "row_ror:8"])
    swap_reduce("v_add_f32", ["v29"], ["v26"])
    a(f"""
    v_mov_b32 v30, 1
    v_mov_b32 v31, 0
    v_lshlrev_b32 v8, 6, v7
    s_lshl_b32 s56, s3, 4
    v_add_u32 v8, s56, v8
    s_mov_b64 exec, 0xf
    ds_write_b128 v8, v[28:31] offset:{L_MX}
    s_mov_b64 exec, -1
    """)
    stamp(5)
    a(f"""
    s_cmp_eq_u32 s3, 2
    s_cbranch_scc1 L_k2b
    s_cmp_lg_u32 s3, 1
    s_cbranch_scc1 L_kfac
    """)
    a(f"""
    s_mov_b32 s8, s36
    s_and_b32 s9, s37, 0xffff
    s_mov_b32 s10, 256
    s_mov_b32 s11, 0x20000
    s_lshr_b32 s57, s2, 5
    s_lshl_b32 s57, s57, 5
    v_mov_b32 v16, 1
    """)
    credit_wait(str(o["tk"]), sleep=4)
    a(f"""
    s_mov_b64 exec, 1
    buffer_atomic_add v16, v15, s[8:11], s57 offen sc0 sc1
    s_waitcnt vmcnt(0)
    v_and_b32 v16, 31, v16
    v_add_u32 v17, 1, v16
    ds_write_b32 v15, v17 offset:{L_RL}
    v_readfirstlane_b32 s55, v16
    s_mov_b64 exec, -1
    """)
    stamp(1)
    a(f"""
    s_cmp_lt_u32 s55, 16
    s_cbranch_scc1 L_wait
    """)
    role_unit()
    a(f"""
    s_lshr_b32 s56, s54, 3
    s_mul_i32 s57, s56, {56*1024}
    s_and_b32 s58, s54, 7
    s_lshl_b32 s60, s58, 7
    s_add_u32 s57, s57, s60
    s_add_u32 s8, s32, s57
    s_addc_u32 s9, s33, 0
    s_and_b32 s9, s9, 0xffff
    s_sub_u32 s10, {1792*1024}, s57
    s_mov_b32 s11, 0x20000
    s_movk_i32 s60, 1024
    """)
    dma_off("v10", "v11", "s60", "v6")
    a(f"""
    v_mov_b32 v16, 0
    v_mov_b32 v17, 0
    v_mov_b32 v18, 0
    v_mov_b32 v19, 0
    ds_write_b128 v84, v[16:19] offset:{L_WD + 7168}
    ds_write_b128 v84, v[16:19] offset:{L_WD + 8192 + 7168}
    v_lshrrev_b32 v6, 3, v0
    v_and_b32 v7, 7, v0
    s_mul_i32 s57, s56, 14
    v_add_u32 v20, s57, v7
    v_min_u32 v21, 5, v7
    v_add_u32 v21, s57, v21
    v_add_u32 v21, 8, v21
    """)
    for r in ("v20", "v21"):
        a(f"""
        v_lshrrev_b32 v8, 2, {r}
        v_and_b32 {r}, 3, {r}
        v_lshlrev_b32 {r}, 4, {r}
        v_lshl_add_u32 {r}, v8, 9, {r}
        v_lshl_add_u32 {r}, v6, 6, {r}
        """)
    a(f"""
    s_mov_b32 s60, {WS_P1 + 64*2048}
    s_mov_b32 s61, {WS_P1 + 64*2048 + P1_KQ}
    s_mov_b32 s62, {WS_P1 + 92*2048}
    s_mov_b32 s63, {WS_P1 + 92*2048 + P1_KQ}
    """)
    GL = [f"buffer_load_dwordx4 v[{24+16*rho+4*k}:{27+16*rho+4*k}], {('v20','v21')[rho]}, {WS}, s{60+k} offen sc1" for rho in range(2) for k in range(4)]
    def wd_dma():
        for tl in range(2):
            for j in range(7):
                if j in (0, 4): a(f"s_mov_b32 m0, {L_WD + tl*8192 + (j>>2)*4096}")
                a(f"s_mov_b32 s64, {j*8192 - (j&3)*1024 + tl*128}")
                a(f"buffer_load_dwordx4 {'v10' if j % 2 == 0 else 'v11'}, s[8:11], s64 offen offset:{(j&3)*1024} nt lds")
    credit_wait(str(o["gthr"] - 2), sleep=4)
    credit_wait(str(o["gthr"]), sleep=1)
    for l in GL: a(l)
    if o["hthr"] > o["gthr"]: credit_wait(str(o["hthr"]), sleep=1)
    wd_dma()
    for i in range(8):
        a(f"s_waitcnt vmcnt({21-i})")
        chk(24 + 4 * i, "v8", i == 0)
    a("""
    v_cmp_ne_u32 vcc, 0, v8
    s_cbranch_vccz L_guok
    """)
    poll(GL, [24 + 4 * j for j in range(8)], sleep=2)
    a("L_guok:")
    G = [f"v{24+16*rho+i}" for rho in range(2) for i in range(4)]
    U = [f"v{32+16*rho+i}" for rho in range(2) for i in range(4)]
    for rho in range(2):
        for i in range(4):
            a(f"v_add_f32 v{24+16*rho+i}, v{24+16*rho+i}, v{28+16*rho+i}")
            a(f"v_add_f32 v{32+16*rho+i}, v{32+16*rho+i}, v{36+16*rho+i}")
    bf16r_n(G + U)
    a(f"s_mov_b32 s57, {LOG2E | 0x80000000}")
    for x in G: a(f"v_mul_f32 {x}, s57, {x}")
    for x in G: a(f"v_exp_f32 {x}, {x}")
    for x in G: a(f"v_add_f32 {x}, 1.0, {x}")
    for x in G: a(f"v_rcp_f32 {x}, {x}")
    bf16r_n(G)
    for x, y in zip(G, U): a(f"v_mul_f32 {x}, {x}, {y}")
    a(f"""
    v_cvt_pk_bf16_f32 v28, v24, v25
    v_cvt_pk_bf16_f32 v29, v26, v27
    v_cvt_pk_bf16_f32 v30, v40, v41
    v_cvt_pk_bf16_f32 v31, v42, v43
    v_cmp_gt_u32 vcc, 6, v7
    v_mul_u32_u24 v8, {HSTR}, v6
    v_lshl_add_u32 v8, v7, 3, v8
    v_cndmask_b32 v30, 0, v30, vcc
    v_cndmask_b32 v31, 0, v31, vcc
    ds_write_b64 v8, v[28:29] offset:{L_H}
    ds_write_b64 v8, v[30:31] offset:{L_H+64}
    v_and_b32 v8, 7, v2
    v_mul_u32_u24 v8, {HSTR}, v8
    v_lshl_add_u32 v8, v1, 4, v8
    ds_read_b128 v[24:27], v8 offset:{L_H}
    ds_read_b128 v[28:31], v8 offset:{L_H+64}
    s_waitcnt vmcnt(0)
    """)
    a(f"""
    s_lshl_b32 s57, s58, 16
    s_lshl_b32 s60, s56, 11
    s_add_u32 s57, s57, s60
    s_add_u32 s60, s57, {WS_B}
    s_add_u32 s61, s60, 0x10000
    s_mov_b32 s66, 0x00ff00ff
    s_mov_b32 s67, 0x00ff00ff
    """)
    for nt in range(4):
        a(f"v_xor_b32 v{16+nt}, {nt << 5}, v88")
    for tl in range(2):
        for nt in range(4):
            if nt == 2: a("s_waitcnt lgkmcnt(4)")
            for ks in range(2):
                for hf in range(2):
                    r = 128 + 64 * tl + 16 * nt + 4 * ks + 2 * hf
                    a(f"ds_read_b64_tr_b16 v[{r}:{r+1}], v{16+nt} offset:{L_WD + tl*8192 + ks*4096 + hf*512}")
        a("s_waitcnt lgkmcnt(0)")
        for ks in range(2):
            for nt in range(4):
                r = 128 + 64 * tl + 16 * nt + 4 * ks
                d = 32 + 16 * tl + 4 * nt
                c = "0" if ks == 0 else f"v[{d}:{d+3}]"
                a(f"v_mfma_f32_16x16x32_bf16 v[{d}:{d+3}], v[{r}:{r+3}], v[{24+4*ks}:{27+4*ks}], {c}")
    for tl in range(2):
        for nt in range(4): tag(32 + 16 * tl + 4 * nt)
        a("s_mov_b64 exec, s[66:67]")
        for nt in range(4):
            d = 32 + 16 * tl + 4 * nt
            a(f"buffer_store_dwordx4 v[{d}:{d+3}], v89, {WS}, s{60+tl} offen offset:{nt*512} sc1")
        a("s_mov_b64 exec, -1")
    stamp(2)
    a("s_branch L_fin")
    a(f"""
    L_kfac:
    v_lshrrev_b32 v6, 5, v0
    s_and_b32 s56, s3, 2
    v_add_u32 v6, s56, v6
    v_lshlrev_b32 v10, 6, v6
    """)
    lds_spin([f"ds_read_b128 v[{16+4*j}:{19+4*j}], v10 offset:{L_MX+16*j}" for j in range(4)], ["v18", "v22", "v26", "v30"], sleep=4)
    a(f"""
    v_max3_f32 v32, v16, v20, v24
    v_max_f32 v32, v32, v28
    s_mov_b32 s69, {LOG2E}
    """)
    for j in range(4): a(f"v_sub_f32 v{60+j}, v{16+4*j}, v32")
    for j in range(4): a(f"v_mul_f32 v{60+j}, s69, v{60+j}")
    for j in range(4): a(f"v_exp_f32 v{60+j}, v{60+j}")
    a(f"""
    v_mul_f32 v33, v60, v17
    v_fmac_f32 v33, v61, v21
    v_fmac_f32 v33, v62, v25
    v_fmac_f32 v33, v63, v29
    v_mov_b32 v34, v32
    v_mov_b32 v35, v33
    """)
    tag(32)
    a(f"""
    s_lshr_b32 s56, s2, 5
    s_lshl_b32 s57, s56, 11
    s_bfe_u32 s58, s2, {(3 << 16) | 2}
    s_lshl_b32 s60, s58, 6
    s_add_u32 s57, s57, s60
    s_lshl_b32 s61, s59, 4
    s_add_u32 s57, s57, s61
    s_add_u32 s57, s57, {WS_ML}
    v_lshlrev_b32 v10, 9, v6
    s_mov_b32 s96, {o['spin']}
    L_md:
    ds_read_b32 v8, v15 offset:{L_MD}
    s_waitcnt lgkmcnt(0)
    v_readfirstlane_b32 s70, v8
    s_cmp_lg_u32 s70, 0
    s_cbranch_scc1 L_mdd
    s_sleep 2
    s_sub_u32 s96, s96, 1
    s_cbranch_scc0 L_md
    L_mdd:
    s_mov_b32 s62, 1
    s_mov_b32 s63, 1
    s_mov_b64 exec, s[62:63]
    s_cmp_eq_u32 s70, 2
    s_cbranch_scc1 L_mll
    buffer_store_dwordx4 v[32:35], v10, {WS}, s57 offen sc1
    s_branch L_mld
    L_mll:
    buffer_store_dwordx4 v[32:35], v10, {WS}, s57 offen
    L_mld:
    s_mov_b64 exec, -1
    v_and_b32 v8, 1, v0
    v_lshlrev_b32 v64, 10, v8
    v_lshl_add_u32 v64, v6, 8, v64
    v_and_b32 v9, 31, v0
    v_lshrrev_b32 v8, 1, v9
    v_lshl_add_u32 v64, v8, 4, v64
    v_lshlrev_b32 v65, 14, v6
    v_lshl_add_u32 v65, v9, 6, v65
    s_lshl_b32 s57, s56, 16
    s_lshl_b32 s58, s58, 11
    s_add_u32 s57, s57, s58
    s_add_u32 s57, s57, s61
    s_add_u32 s47, s57, {WS_O}
    v_lshlrev_b32 v11, 4, v9
    v_lshlrev_b32 v10, 2, v9
    """)
    role_wait()
    a(f"""
    s_cmp_lg_u32 s3, 0
    s_cbranch_scc1 L_k3b
    v_mov_b32 v8, s54
    ds_write_b32 v15, v8 offset:{L_MD+12}
    s_cmp_lt_u32 s55, 16
    s_cbranch_scc1 L_k0w
    v_mov_b32 v8, 2
    ds_write_b32 v15, v8 offset:{L_MD+8}
    s_branch L_kpub
    L_k0w:
    s_lshr_b32 s57, s54, 3
    s_lshl_b32 s57, s57, 9
    s_add_u32 s63, s57, {WS_ML}
    """)
    credit_wait(str(o["mlstart"]), sleep=4)
    poll([f"buffer_load_dwordx4 v[20:23], v11, {WS}, s63 offen sc1"], [20], sleep=4)
    a(f"""
    v_and_b32 v20, 0xffffff00, v20
    v_max_f32_dpp v24, v20, v20 quad_perm:[1,0,3,2] {DPP}
    v_max_f32_dpp v24, v24, v24 quad_perm:[2,3,0,1] {DPP}
    v_sub_f32 v24, v20, v24
    v_mul_f32 v24, s69, v24
    v_exp_f32 v24, v24
    v_mul_f32 v25, v24, v21
    """)
    dpp_reduce("v_add_f32", ["v25"], QUAD)
    a(f"""
    v_rcp_f32 v25, v25
    v_mul_f32 v24, v24, v25
    ds_write_b32 v10, v24 offset:{L_WT}
    ds_write_b32 v15, v14 offset:{L_MD+8}
    """)
    a("L_kpub:")
    tail_fetch(sleep=4)
    credit_wait(str(CEND - 2), sleep=4)
    credit_wait(str(CEND), sleep=0)
    stamp(11)
    for w in range(4):
        a(f"ds_read_b128 v[{16+4*w}:{19+4*w}], v64 offset:{L_O + w*2048}")
    for w in range(4):
        a(f"s_waitcnt lgkmcnt({3-w})")
        for i in range(4):
            if w == 0: a(f"v_mul_f32 v{16+i}, v60, v{16+i}")
            else: a(f"v_fmac_f32 v{16+i}, v{60+w}, v{16+4*w+i}")
    tag(16)
    a(f"""
    s_cmp_eq_u32 s70, 2
    s_cbranch_scc0 L_kpg
    buffer_store_dwordx4 v[16:19], v65, {WS}, s47 offen
    """)
    stamp(9)
    a(f"""
    s_branch L_kpost
    L_kpg:
    buffer_store_dwordx4 v[16:19], v65, {WS}, s47 offen sc1
    L_kpost:
    s_mov_b64 exec, 1
    ds_add_u32 v15, v14 offset:{L_CR}
    s_mov_b64 exec, -1
    s_branch L_wait2
    """)
    a(f"""
    L_k2b:
    s_lshr_b32 s70, s2, 5
    s_lshl_b32 s70, s70, 16
    s_and_b32 s71, s2, 31
    s_lshl_b32 s71, s71, 6
    s_add_u32 s70, s70, s71
    s_and_b32 s61, s2, 7
    s_lshl_b32 s61, s61, 10
    s_lshr_b32 s71, s2, 3
    s_lshl_b32 s71, s71, 5
    s_add_u32 s61, s61, s71
    s_add_u32 s98, s70, {WS_S}
    s_add_u32 s99, s98, 0x8000
    s_add_u32 s52, s70, {WS_B}
    s_add_u32 s53, s52, 0x8000
    v_lshlrev_b32 v91, 3, v90
    v_lshl_add_u32 v91, v1, 1, v91
    buffer_load_ushort v80, v91, s[12:15], s61 offen
    v_lshrrev_b32 v13, 2, v0
    v_lshlrev_b32 v13, 11, v13
    v_lshl_add_u32 v13, v90, 4, v13
    s_mov_b32 s4, s34
    s_and_b32 s5, s35, 0xffff
    s_mov_b32 s6, 8192
    s_mov_b32 s7, 0x20000
    s_mov_b32 s10, 0x000f000f
    s_mov_b32 s11, 0x000f000f
    """)
    def reduce16(base):
        for i in range(4): a(f"v_add_f32 v{base+i}, v{base+i}, v{base+4+i}")
        a(f"""
        v_permlane32_swap_b32 v{base}, v{base+2}
        v_permlane32_swap_b32 v{base+1}, v{base+3}
        v_add_f32 v{base}, v{base}, v{base+2}
        v_add_f32 v{base+1}, v{base+1}, v{base+3}
        v_permlane16_swap_b32 v{base}, v{base+1}
        v_add_f32 v{base}, v{base}, v{base+1}
        """)
        dpp_reduce("v_add_f32", [f"v{base}"], ["row_ror:8", "row_ror:4"])
    def gate():
        reduce16(64)
        bf16r("v64", "v64")
        a(f"""
        v_mul_f32 v65, {LOG2E | 0x80000000}, v64
        v_exp_f32 v65, v65
        v_add_f32 v65, 1.0, v65
        v_rcp_f32 v65, v65
        v_mul_f32 v64, v64, v65
        """)
        bf16r("v64", "v64")
        a("v_lshlrev_b32 v81, 16, v80")
    BL = [f"buffer_load_dwordx4 v[{64+4*j}:{67+4*j}], v13, {WS}, s{52+j} offen sc1" for j in range(2)]
    a("s_mov_b32 s62, 0")
    if o["bstart"]:
        credit_wait(str(o["bstart"]), sleep=4)
        for l in BL: a(l)
        for j in range(2):
            a(f"s_waitcnt vmcnt({1-j})")
            chk(64 + 4 * j, "v8", j == 0)
        a(f"""
        v_cmp_ne_u32 vcc, 0, v8
        s_cbranch_vccnz L_k2c
        s_mov_b32 s62, 1
        """)
        gate()
        a("L_k2c:")
    stamp(2)
    tail_fetch(sleep=4)
    a(f"""
    s_cmp_eq_u32 s63, 1
    s_cbranch_scc1 L_wait1
    """)
    credit_wait(str(CEND - 1), sleep=4)
    credit_wait(str(CEND + 2), sleep=1)
    a(f"""
    s_sleep {o['d3']}
    L_k2d:
    """)
    if o["d2"]: a(f"s_sleep {o['d2']}")
    SL = [f"buffer_load_dwordx4 v[{16+4*j}:{19+4*j}], v13, {WS}, s{98+j} offen sc1" for j in range(2)]
    a("""
    s_cmp_eq_u32 s62, 1
    s_cbranch_scc1 L_gok
    """)
    for l in BL + SL: a(l)
    for j in range(2):
        a(f"s_waitcnt vmcnt({3-j})")
        chk(64 + 4 * j, "v8", j == 0)
    a("""
    v_cmp_ne_u32 vcc, 0, v8
    s_cbranch_vccz L_bok
    """)
    poll(BL, [64 + 4 * j for j in range(2)])
    a("L_bok:")
    gate()
    for j in range(2):
        a(f"s_waitcnt vmcnt({1-j})")
        chk(16 + 4 * j, "v8", j == 0)
    a("""
    v_cmp_ne_u32 vcc, 0, v8
    s_cbranch_vccz L_sok
    L_gok:
    """)
    poll(SL, [16 + 4 * j for j in range(2)])
    a("L_sok:")
    stamp(9)
    reduce16(16)
    bf16r("v16", "v16")
    a("v_mul_f32 v16, v16, v64")
    bf16r("v16", "v16")
    a(f"""
    v_add_f32 v16, v16, v81
    v_cvt_pk_bf16_f32 v16, v16, v16
    s_mov_b64 exec, s[10:11]
    buffer_store_short v16, v91, s[4:7], s61 offen
    s_cmp_lg_u32 s2, 0
    s_cbranch_scc1 L_fin
    v_mov_b32 v8, {sE1}
    s_mov_b64 exec, 1
    buffer_store_dword v8, v15, {WS}, 0 offen sc1
    s_branch L_fin
    """)
    a(f"""
    L_k3b:
    s_cmp_ge_u32 s55, 16
    s_cbranch_scc1 L_kpub
    s_lshr_b32 s56, s54, 3
    s_lshl_b32 s56, s56, 17
    s_and_b32 s57, s54, 7
    s_lshl_b32 s57, s57, 7
    s_add_u32 s56, s56, s57
    s_add_u32 s8, s24, s56
    s_addc_u32 s9, s25, 0
    s_and_b32 s9, s9, 0xffff
    s_sub_u32 s10, {4096*1024}, s56
    s_mov_b32 s11, 0x20000
    s_movk_i32 s60, 1024
    """)
    dma_off("v10", "v11", "s60", "v6")
    for step in range(4):
        credit_wait(str(o["wothr"] + step), sleep=1)
        for tl in range(2):
            grp = step
            a(f"s_mov_b32 m0, {L_WO + tl*16384 + grp*4096}")
            for q in range(4):
                a(f"s_mov_b32 s{60+q}, {(grp*4+q)*8192 - q*1024 + tl*128}")
            for q in range(4):
                a(f"buffer_load_dwordx4 {'v10' if q % 2 == 0 else 'v11'}, s[8:11], s{60+q} offen offset:{q*1024} nt lds")
    stamp(2)
    a("s_branch L_kpub")

    a(f"""
    L_vwave:
    s_add_u32 s4, s20, s56
    s_addc_u32 s5, s21, 0
    s_and_b32 s5, s5, 0xffff
    s_mov_b32 s71, s58
    """)
    late_setup()
    a("s_barrier")
    post()
    a("s_waitcnt lgkmcnt(0)")
    tags_setup()
    tail_pre()
    a(f"""
    s_cmp_ge_u32 s67, 240
    s_cbranch_scc1 L_vnos1
    v_lshlrev_b32 v10, 4, v6
    v_mul_u32_u24 v11, {XNS}, v6
    v_lshl_add_u32 v11, v7, 4, v11
    s_lshl_b32 s66, s71, 7
    v_add_u32 v11, s66, v11
    v_and_b32 v12, 7, v2
    v_mul_u32_u24 v12, {XNS}, v12
    v_lshl_add_u32 v12, v1, 4, v12
    s_lshl_b32 s66, s71, 5
    v_xor_b32 v47, s66, v88
    v_add_u32 v47, {L_W1}, v47
    s_lshr_b32 s66, s67, 1
    s_lshl_b32 s66, s66, 11
    s_mul_i32 s69, s62, {P1_KQ}
    s_add_u32 s66, s66, s69
    s_lshl_b32 s69, s71, 9
    s_add_u32 s66, s66, s69
    s_add_u32 s69, s66, {WS_P1}
    s_lshl_b32 s70, s71, 2
    s_add_u32 s70, s70, {L_F1}
    v_lshlrev_b32 v44, 2, v90
    s_mov_b32 s66, 0x00ff00ff
    s_mov_b32 s67, 0x00ff00ff
    s_waitcnt vmcnt(0)
    s_cmp_lt_u32 s71, 2
    s_cbranch_scc1 L_vnp
    """)
    post()
    a("L_vnp:")
    stamp(1)
    lds_spin([f"ds_read_b128 v[16:19], v10 offset:{L_ST}"], ["v18"])
    for p in range(4):
        a(f"v_lshlrev_b32 v{24+2*p}, 16, v{48+p}")
        a(f"v_and_b32 v{25+2*p}, 0xffff0000, v{48+p}")
    for i in range(8): a(f"v_sub_f32 v{24+i}, v{24+i}, v16")
    for p in range(4): a(f"v_cvt_pk_bf16_f32 v{48+p}, v{24+2*p}, v{25+2*p}")
    for p in range(4):
        a(f"v_lshlrev_b32 v{24+2*p}, 16, v{48+p}")
        a(f"v_and_b32 v{25+2*p}, 0xffff0000, v{48+p}")
    for i in range(8): a(f"v_mul_f32 v{24+i}, v{24+i}, v17")
    for p in range(4): a(f"v_cvt_pk_bf16_f32 v{48+p}, v{24+2*p}, v{25+2*p}")
    a(f"ds_write_b128 v11, v[48:51] offset:{L_XN}")
    flag_write("s70")
    spin_flag("v44", L_F1)
    for ks in range(8):
        a(f"ds_read_b128 v[{128+4*ks}:{131+4*ks}], v12 offset:{L_XN + ks*64}")
        a(f"ds_read_b64_tr_b16 v[{160+4*ks}:{161+4*ks}], v47 offset:{ks*4096}")
        a(f"ds_read_b64_tr_b16 v[{162+4*ks}:{163+4*ks}], v47 offset:{ks*4096 + 512}")
        if ks >= 4:
            k2 = ks - 4
            a(f"s_waitcnt lgkmcnt({12})")
            c = "0" if k2 == 0 else "v[16:19]"
            a(f"v_mfma_f32_16x16x32_bf16 v[16:19], v[{160+4*k2}:{163+4*k2}], v[{128+4*k2}:{131+4*k2}], {c}")
    for k2 in range(4, 8):
        a(f"s_waitcnt lgkmcnt({3*(7-k2)})")
        a(f"v_mfma_f32_16x16x32_bf16 v[16:19], v[{160+4*k2}:{163+4*k2}], v[{128+4*k2}:{131+4*k2}], v[16:19]")
    tag(16)
    a(f"""
    s_mov_b64 exec, s[66:67]
    {'' if o['nop1'] else 'buffer_store_dwordx4 v[16:19], v89, ' + WS + ', s69 offen sc1'}
    s_mov_b64 exec, -1
    """)
    stamp(2)
    a(f"""
    s_branch L_vload
    L_vnos1:
    s_cmp_lt_u32 s71, 2
    s_cbranch_scc1 L_vnp2
    """)
    post()
    a("L_vnp2:")
    a(f"""
    L_vload:
    v_lshlrev_b32 v4, 4, v0
    """)
    for t in range(8):
        a(f"s_mov_b32 s{60+t}, {t*4096}")
    a(f"""
    v_and_b32 v7, 3, v0
    v_lshrrev_b32 v6, 2, v2
    v_mov_b32 v10, 0x0c0c0c0c
    """)
    for tb in range(2):
        lo = 0x0c0c0000 | ((2 * tb + 1) << 8) | (2 * tb)
        hi = ((2 * tb + 1) << 24) | ((2 * tb) << 16) | 0x0c0c
        a(f"""
        v_mov_b32 v11, {lo}
        v_mov_b32 v12, {hi}
        v_cmp_eq_u32 vcc, 0, v7
        v_cndmask_b32 v{32+2*tb}, v10, v11, vcc
        v_cmp_eq_u32 vcc, 1, v7
        v_cndmask_b32 v{32+2*tb}, v{32+2*tb}, v12, vcc
        v_cmp_eq_u32 vcc, 2, v7
        v_cndmask_b32 v{33+2*tb}, v10, v11, vcc
        v_cmp_eq_u32 vcc, 3, v7
        v_cndmask_b32 v{33+2*tb}, v{33+2*tb}, v12, vcc
        """)
    NW = 8
    XW = 40
    for r in range(XW, XW + 4 * NW + 2):
        if (r - XW) % 4 in (0, 1): a(f"v_mov_b32 v{r}, 0")
    a(f"""
    v_lshl_add_u32 v10, v6, 2, v1
    v_mul_u32_u24 v10, 80, v10
    s_mul_i32 s56, s71, {PW}
    v_add_u32 v10, s56, v10
    s_lshl_b32 s56, s71, 2
    v_mov_b32 v11, s56
    s_lshl_b32 s56, s71, 11
    v_lshlrev_b32 v12, 4, v0
    v_add_u32 v12, s56, v12
    s_sub_i32 s70, s68, 4
    """)
    credit_wait("s70", sleep=4)
    stream_issue()
    stamp(3)
    a(f"""
    v_mov_b32 v13, 1
    ds_read_b32 v8, v11 offset:{L_FP}
    s_waitcnt lgkmcnt(0)
    v_cmp_ne_u32 vcc, 1, v8
    s_cbranch_vccz L_pok
    """)
    for k in range(3):
        a(f"s_waitcnt vmcnt({24-8*k})")
        post()
    a("v_mov_b32 v13, 0")
    spin_flag("v11", L_FP)
    a("L_pok:")
    for jj in range(4):
        a(f"ds_read_b128 v[{16+4*jj}:{19+4*jj}], v10 offset:{L_P + jj*16}")
    a("s_waitcnt lgkmcnt(0)")
    stamp(4)
    OA = 76
    def mkx(j):
        T, jj = j >> 2, j & 3
        Wd = XW + 4 * (j % NW)
        r = 16 + 4 * jj + (T >> 1)
        a(f"v_perm_b32 v{Wd+2}, v{r}, v{r}, v{32+2*(T&1)}")
        a(f"v_perm_b32 v{Wd+3}, v{r}, v{r}, v{33+2*(T&1)}")
    for j in range(4): mkx(j)
    for j in range(32):
        Wd = XW + 4 * (j % NW)
        reg = 128 + j * 4
        if j == 24:
            a("""
            s_cmp_lg_u32 s71, 3
            s_cbranch_scc1 L_v3s
            """)
            tail_fetch(sleep=1)
            a("L_v3s:")
        a(f"s_waitcnt vmcnt({31-j})")
        if j % 8 == 7 and j < 31: post("v13")
        c0 = "0" if j == 0 else f"v[{OA}:{OA+3}]"
        c1 = "0" if j == 0 else f"v[{OA+4}:{OA+7}]"
        a(f"v_mfma_f32_16x16x32_bf16 v[{OA}:{OA+3}], v[{Wd+2}:{Wd+5}], v[{reg}:{reg+3}], {c0}")
        a(f"v_mfma_f32_16x16x32_bf16 v[{OA+4}:{OA+7}], v[{Wd}:{Wd+3}], v[{reg}:{reg+3}], {c1}")
        if j + 4 < 32: mkx(j + 4)
    a(f"""
    ds_write_b128 v12, v[{OA}:{OA+3}] offset:{L_O}
    ds_write_b128 v12, v[{OA+4}:{OA+7}] offset:{L_O+1024}
    """)
    post()
    stamp(5)
    a("""
    s_cmp_eq_u32 s71, 3
    s_cbranch_scc1 L_wait2
    L_wait:
    """)
    tail_fetch(sleep=4)
    a("L_wait1:")
    credit_wait(str(CEND - 1), sleep=4)
    a("""
    L_wait2:
    s_cmp_lg_u32 s63, 1
    s_cbranch_scc1 L_fin
    """)
    credit_wait(str(CEND + 2), sleep=1)
    if o["d1"]: a(f"s_sleep {o['d1']}")
    a(f"""
    L_tail:
    s_mov_b32 s96, {o['poll']}
    """)
    stamp(6)
    a(f"""
    L_op:
    buffer_load_dwordx4 v[16:19], v84, {WS}, s46 offen sc1
    buffer_load_dwordx4 v[20:23], v84, {WS}, s46 offen offset:1024 sc1
    s_waitcnt vmcnt(1)
    """)
    chk(16, "v8", True)
    a("s_waitcnt vmcnt(0)")
    chk(20, "v8", False)
    a(f"""
    v_cmp_ne_u32 vcc, 0, v8
    s_cbranch_vccz L_opd
    s_sub_u32 s96, s96, 1
    s_cbranch_scc0 L_op
    L_opd:
    s_waitcnt lgkmcnt(0)
    """)
    stamp(7)
    for i in range(8):
        a(f"v_mul_f32 v{16+i}, v100, v{16+i}")
    dpp_reduce("v_add_f32", [f"v{16+i}" for i in range(8)], QUAD)
    a(f"""
    v_cvt_pk_bf16_f32 v24, v16, v17
    v_cvt_pk_bf16_f32 v25, v18, v19
    v_cvt_pk_bf16_f32 v26, v20, v21
    v_cvt_pk_bf16_f32 v27, v22, v23
    s_mov_b64 exec, s[64:65]
    ds_write_b64 v86, v[24:25] offset:{L_OI}
    ds_write_b64 v86, v[26:27] offset:{L_OI+128}
    s_mov_b64 exec, -1
    s_lshl_b32 s57, s3, 5
    s_and_b32 s57, s57, 96
    v_xor_b32 v9, s57, v88
    s_cmp_lt_u32 s3, 4
    s_waitcnt lgkmcnt(0)
    s_barrier
    s_cbranch_scc1 L_kend
    """)
    stamp(11)
    def trd(tl, ks):
        r = 36 + 20 * tl + 4 * ks
        a(f"ds_read_b64_tr_b16 v[{r}:{r+1}], v9 offset:{L_WO + tl*16384 + ks*4096}")
        a(f"ds_read_b64_tr_b16 v[{r+2}:{r+3}], v9 offset:{L_WO + tl*16384 + ks*4096 + 512}")
    for ks in range(3):
        a(f"ds_read_b128 v[{16+4*ks}:{19+4*ks}], v87 offset:{L_OI + ks*64}")
        trd(0, ks); trd(1, ks)
    for ks in range(4):
        a(f"s_waitcnt lgkmcnt({10 if ks < 2 else 5*(3-ks)})")
        if ks == 0:
            a(f"ds_read_b128 v[28:31], v87 offset:{L_OI + 192}")
            trd(0, 3); trd(1, 3)
        c0 = "0" if ks == 0 else "v[32:35]"
        c1 = "0" if ks == 0 else "v[52:55]"
        a(f"v_mfma_f32_16x16x32_bf16 v[32:35], v[{36+4*ks}:{39+4*ks}], v[{16+4*ks}:{19+4*ks}], {c0}")
        a(f"v_mfma_f32_16x16x32_bf16 v[52:55], v[{56+4*ks}:{59+4*ks}], v[{16+4*ks}:{19+4*ks}], {c1}")
    tag(32)
    a(f"""
    s_mov_b64 exec, s[66:67]
    buffer_store_dwordx4 v[32:35], v89, {WS}, s1 offen sc1
    s_mov_b64 exec, -1
    """)
    tag(52)
    a(f"""
    s_mov_b64 exec, s[66:67]
    buffer_store_dwordx4 v[52:55], v89, {WS}, s0 offen sc1
    s_mov_b64 exec, -1
    """)
    stamp(8)
    a("""
    s_branch L_fin
    L_kend:
    s_cmp_eq_u32 s3, 2
    s_cbranch_scc1 L_k2d
    L_fin:
    """)
    if diag:
        stamp(10)
        a(f"""
        s_waitcnt lgkmcnt(0)
        s_mov_b64 exec, 1
        s_lshl_b32 s56, s2, 10
        s_lshl_b32 s57, s3, 7
        s_add_u32 s56, s56, s57
        s_add_u32 s38, s38, 0x10000000
        s_addc_u32 s39, s39, 0
        v_mov_b32 v4, s56
        s_getreg_b32 s57, hwreg(HW_REG_XCC_ID)
        s_getreg_b32 s58, hwreg(HW_REG_HW_ID)
        v_mov_b32 v50, s57
        v_mov_b32 v51, s58
        global_store_dwordx2 v4, v[50:51], s[38:39] offset:120
        """)
        for i in range(12):
            a(f"v_mov_b32 v{16+2*i}, s{72+2*i}")
            a(f"v_mov_b32 v{17+2*i}, s{73+2*i}")
            a(f"global_store_dwordx2 v4, v[{16+2*i}:{17+2*i}], s[38:39] offset:{8*i}")
    a("""
    L_end:
    s_endpgm
    """)
    return wrap(a.text(), 256, 512, L_END, 256)

if __name__ == "__main__":
    import json
    base = dict(d2=24, d1=2)
    open("k9.s", "w").write(gen(**base))
    V = json.loads(sys.argv[1]) if len(sys.argv) > 1 else {}
    for k, v in V.items():
        d = dict(diag=1, **base); d.update(v)
        open(k + ".s", "w").write(gen(**d))
    print(" ".join(k + ".s" for k in V)); print(", ".join('"dev/%s.s"' % k for k in V))
```
